```python
import torch

def _softmax(x, axis=-1):
    return torch.softmax(x, dim=axis)

def _gelu(x):
    return torch.nn.functional.gelu(x, approximate='tanh')

def _silu(x):
    return torch.nn.functional.silu(x)

def _sigmoid(x):
    return torch.sigmoid(x)

def _layernorm(x, axis=-1, eps=1e-05):
    m = x.mean(dim=axis, keepdim=True)
    v = x.var(dim=axis, keepdim=True, unbiased=False)
    return (x - m) / torch.sqrt(v + eps)

def _scatter_add(tgt, idx, src, axis=0):
    return tgt.clone().index_add_(axis, idx, src)

def _segment_sum(src, seg, n):
    out = torch.zeros((n,) + src.shape[1:], dtype=src.dtype)
    return out.index_add_(0, seg, src)

def _pad(x, pw):
    flat = tuple((v for pair in reversed(pw) for v in pair))
    return torch.nn.functional.pad(x, flat)
kernel_name = 'adaLN_cond__compressed_kv_cla__mixer_channel_mlp__decode'

def setup_inputs():

    _w = lambda a: (lambda t: t.to(torch.bfloat16) if t.is_floating_point() else t)(torch.as_tensor(a))

    def _A_setup():
        B, H, Sq, Sk, D, M = (2, 32, 1, 8192, 128, 512)
        Dc = 4 * D
        return {'x': _w((lambda *s: torch.randn(*s, dtype=torch.bfloat16) * 0.1)(B, Sq, M)), 'c_kv': _w((lambda *s: torch.randn(*s, dtype=torch.bfloat16) * 0.8)(B, Sk, Dc)), 'w_q': _w((lambda *s: torch.randn(*s, dtype=torch.bfloat16) * 0.8)(M, H, D) * M ** (-0.5)), 'w_uk': _w((lambda *s: torch.randn(*s, dtype=torch.bfloat16) * 0.8)(Dc, H, D) * Dc ** (-0.5)), 'w_uv': _w((lambda *s: torch.randn(*s, dtype=torch.bfloat16) * 0.8)(Dc, H, D) * Dc ** (-0.5)), 'w_o': _w((lambda *s: torch.randn(*s, dtype=torch.bfloat16) * 0.8)(H, D, M) * (H * D) ** (-0.5))}
    _A_in = _A_setup()

    def _B_setup():
        B, S, D, F = (2, 1, 512, 1792)
        return {'x': _w((lambda *s: torch.randn(*s, dtype=torch.bfloat16) * 0.1)(B, S, D)), 'w1': _w((lambda *s: torch.randn(*s, dtype=torch.bfloat16) * 3.2)(D, F) * D ** (-0.5)), 'b1': _w((lambda *s: torch.randn(*s, dtype=torch.bfloat16) * 3.2)(F)), 'w2': _w((lambda *s: torch.randn(*s, dtype=torch.bfloat16) * 0.8)(F, D) * F ** (-0.5)), 'b2': _w((lambda *s: torch.randn(*s, dtype=torch.bfloat16) * 1.6)(D))}
    _B_in = _B_setup()
    return {'A_x': _A_in['x'], 'A_c_kv': _A_in['c_kv'], 'A_w_q': _A_in['w_q'], 'A_w_uk': _A_in['w_uk'], 'A_w_uv': _A_in['w_uv'], 'A_w_o': _A_in['w_o'], 'B_x': _B_in['x'], 'B_w1': _B_in['w1'], 'B_b1': _B_in['b1'], 'B_w2': _B_in['w2'], 'B_b2': _B_in['b2'], 'c': _w((lambda *s: torch.randn(*s, dtype=torch.bfloat16) * 0.8)(2, 512) * 8.0), 'w_mod': _w((lambda *s: torch.randn(*s, dtype=torch.bfloat16) * 0.8)(512, 6 * 512) * 512 ** (-0.5) * 8.0)}

def reference(A_x, A_c_kv, A_w_q, A_w_uk, A_w_uv, A_w_o, B_x, B_w1, B_b1, B_w2, B_b2, c, w_mod):

    def _A_ref(x, c_kv, w_q, w_uk, w_uv, w_o):
        B, Sq, M = (x.shape[0], x.shape[1], x.shape[2])
        Sk = c_kv.shape[1]
        H, D = (w_q.shape[1], w_q.shape[2])
        q = torch.einsum('bqm,mhd->bhqd', x, w_q)
        k = torch.einsum('bkc,chd->bhkd', c_kv, w_uk)
        v = torch.einsum('bkc,chd->bhkd', c_kv, w_uv)
        scores = torch.einsum('bhqd,bhkd->bhqk', q, k) * D ** (-0.5)
        off = Sk - Sq
        qi = torch.arange(Sq)[:, None]
        kj = torch.arange(Sk)[None, :]
        cmask = kj <= qi + off
        scores = torch.where(cmask[None, None], scores, -1000000000.0)
        p = _softmax(scores, axis=-1)
        ctx = torch.einsum('bhqk,bhkd->bhqd', p, v)
        return torch.einsum('bhqd,hdm->bqm', ctx, w_o)

    def _B_ref(x, w1, b1, w2, b2):
        y = _layernorm(x, axis=-1)
        h = _gelu(torch.einsum('bsd,df->bsf', y, w1) + b1)
        return torch.einsum('bsf,fd->bsd', h, w2) + b2
    x = A_x
    mod = (_silu(c) @ w_mod).reshape(c.shape[0], 6, 1, -1)
    sa, ca, ga, sb, cb, gb = (mod[:, 0].clone(), mod[:, 1].clone(), mod[:, 2].clone(), mod[:, 3].clone(), mod[:, 4].clone(), mod[:, 5].clone())
    h = _layernorm(x, axis=-1) * (1 + ca) + sa
    x = x + ga * _A_ref(h, A_c_kv, A_w_q, A_w_uk, A_w_uv, A_w_o)
    h = _layernorm(x, axis=-1) * (1 + cb) + sb
    x = x + gb * _B_ref(h, B_w1, B_b1, B_w2, B_b2)
    return x
```

```python
import re
KNAME = "adaLN_cond__compressed_kv_cla__mixer_channel_mlp__decode_kernel"
TRANS = ("v_exp_f32","v_log_f32","v_rcp_f32","v_rsq_f32","v_sqrt_f32","v_sin_f32","v_cos_f32","v_rcp_iflag")
def regs_of(tok):
    tok = tok.strip()
    neg = tok.lstrip("-|").rstrip("|")
    m = re.fullmatch(r"([vas])(\d+)", neg)
    if m: return [(m.group(1), int(m.group(2)))]
    m = re.fullmatch(r"([vas])\[(\d+):(\d+)\]", neg)
    if m: return [(m.group(1), i) for i in range(int(m.group(2)), int(m.group(3)) + 1)]
    if neg == "vcc": return [("s", 106), ("s", 107)]
    if neg == "vcc_lo": return [("s", 106)]
    if neg == "vcc_hi": return [("s", 107)]
    if neg == "exec": return [("s", 126), ("s", 127)]
    if neg == "m0": return [("s", 124)]
    return []
VCC = [("s",106),("s",107)]
class Ins:
    def __init__(s, text):
        s.text = text; s.tagw = None; s.tagr = []
        code = text
        if ";" in text:
            code, cm = text.split(";", 1)
            m = re.search(r"@w:(\w+)", cm)
            if m: s.tagw = m.group(1)
        code = code.strip()
        s.label = code[:-1] if code.endswith(":") else None
        s.kind = "none"; s.rd = []; s.wr = []; s.op = ""; s.nop = 0; s.pre = []
        s.dpp = False; s.target = None; s.A = s.B = s.C = []; s.stdata = []
        if s.label or not code or code.startswith("."): return
        parts = code.split(None, 1); op = s.op = parts[0]
        rest = parts[1] if len(parts) > 1 else ""
        if op == "WAIT":
            s.kind = "pseudo"; s.tagr = rest.replace(",", " ").split(); return
        xm = " ".join(re.findall(r"\b[a-z_]+:\[[^\]]*\]", rest)); rest0 = rest
        rest = re.sub(r"\b[a-z_]+:\[[^\]]*\]", "", rest).strip()
        ops = [x.strip() for x in rest.split(",")] if rest else []
        if ops:
            last = ops[-1].split()
            mods = " ".join(last[1:]); ops[-1] = last[0] if last else ""
        else: mods = ""
        mods = mods + " " + xm
        s.mods = mods
        R = [regs_of(o) for o in ops]
        fl = lambda L: [r for x in L for r in x]
        if op.startswith("v_mfma"):
            s.kind = "mfma"; s.wr = R[0]; s.A, s.B, s.C = R[1], R[2], R[3]; s.rd = fl(R[1:])
        elif op.startswith("v_"):
            s.kind = "valu"
            s.dpp = "_dpp" in op or "row_" in mods or "quad_perm" in mods
            if op.startswith("v_permlane") and "swap" in op or op.startswith("v_swap"):
                s.wr = fl(R[:2]); s.rd = fl(R[:2])
            elif re.match(r"v_(add|sub|subrev)_co_u32|v_addc_co|v_subb_co|v_mad_u64|v_div_scale", op):
                s.wr = fl(R[:2]); s.rd = fl(R[2:])
            else:
                s.wr = R[0]; s.rd = fl(R[1:])
                if re.match(r"v_(fmac|mac|dot2c|writelane|pk_fmac)", op) or s.dpp: s.rd = s.rd + R[0]
                if op.startswith("v_cndmask") and len(ops) == 3: s.rd = s.rd + VCC
                if op.startswith("v_cmpx"): raise Exception("no cmpx")
        elif op.startswith("global_") or op.startswith("buffer_"):
            s.kind = "vmem"
            if "_lds_" in op or " lds" in " " + mods: s.rd = fl(R) + [("s",124)]
            elif "_load" in op: s.wr = R[0]; s.rd = fl(R[1:])
            elif "_store" in op:
                s.rd = fl(R); d = R[1] if op.startswith("global_") else R[0]
                if len(d) > 2: s.stdata = d
            elif "atomic" in op:
                if "sc0" in mods: s.wr = R[0]; s.rd = fl(R[1:])
                else: s.rd = fl(R)
            else: raise Exception(op)
        elif op.startswith("ds_"):
            s.kind = "ds"
            if op.startswith("ds_read") or "permute" in op or "swizzle" in op: s.wr = R[0]; s.rd = fl(R[1:])
            else:
                s.rd = fl(R)
                if len(R[1]) > 2: s.stdata = R[1]
        elif op.startswith("s_"):
            if op.startswith("s_load") or op.startswith("s_memrealtime") or op.startswith("s_memtime"):
                s.kind = "smem"; s.wr = R[0]; s.rd = fl(R[1:])
            elif op in ("s_branch",) or op.startswith("s_cbranch"):
                s.kind = "branch"; s.target = ops[0]
                if "vcc" in op: s.rd = VCC
            elif op == "s_endpgm": s.kind = "end"
            elif op == "s_nop": s.kind = "salu"; s.nop = int(ops[0]) + 1
            elif op == "s_waitcnt": s.kind = "wait"; s.rest = rest
            elif op.startswith("s_cmp") or op.startswith("s_bitcmp") or op in ("s_barrier","s_setprio","s_sleep"):
                s.kind = "salu"; s.rd = fl(R)
            else:
                s.kind = "salu"; s.wr = R[0]; s.rd = fl(R[1:])
                if "saveexec" in op: s.wr = s.wr + [("s",126),("s",127)]
                if op.startswith("s_addk") or op.startswith("s_mulk") or op.startswith("s_bitset"): s.rd = s.rd + R[0]
        else: raise Exception("unknown op " + text)
def need(ev, i):
    n = 0; W = set(ev.wr); rd = set(i.rd); wr = set(i.wr)
    if ev.kind == "valu":
        sw = {r for r in W if r[0] == "s"}; vw = W - sw
        if sw & rd:
            if i.kind == "vmem": n = max(n, 5)
            if i.kind == "valu": n = max(n, 4 if "lane" in i.op else 2)
        if vw & rd:
            if i.kind == "mfma": n = max(n, 2)
            if i.kind == "valu":
                if i.dpp or i.op.startswith("v_permlane"): n = max(n, 2)
                if "readlane" in i.op or "readfirstlane" in i.op: n = max(n, 1)
                if "dst_sel" in getattr(ev, "mods", "") or ("op_sel" in getattr(ev, "mods", "") and not ev.op.startswith("v_pk_")): n = max(n, 1)
            if ev.op.startswith(TRANS) and not i.op.startswith(TRANS): n = max(n, 1)
    if ev.op.startswith("v_dot2c") and W & (rd | wr) and i.kind in ("valu","vmem","ds","mfma"):
        if not (i.op == ev.op and i.rd.count(ev.wr[0]) == 1 and i.wr == ev.wr): n = max(n, 3)
    if ev.kind == "salu" and ("s",124) in W and ("s",124) in rd and i.kind in ("vmem","ds"): n = max(n, 1)
    if ev.stdata and i.kind in ("valu","mfma") and set(ev.stdata) & wr: n = max(n, 2)
    if ev.kind == "mfma":
        if i.kind == "mfma":
            if W & (set(i.A) | set(i.B)): n = max(n, 8)
            if W & set(i.C) and list(ev.wr) != list(i.C): n = max(n, 8)
            if W & wr and list(ev.wr) != list(i.C): n = max(n, 8)
        elif i.kind in ("valu","vmem","ds"):
            if W & (rd | wr): n = max(n, 8)
            if i.kind == "valu" and set(ev.C) & wr: n = max(n, 4)
            if i.kind == "valu" and (set(ev.A) | set(ev.B)) & wr: n = max(n, 1)
    return n
class State:
    def __init__(s): s.ev = {}; s.vm = {}; s.lg = {}; s.dead = False
    def copy(s):
        t = State(); t.ev = dict(s.ev); t.vm = dict(s.vm); t.lg = dict(s.lg); t.dead = s.dead; return t
    def merge(s, o):
        if o.dead: return
        if s.dead: s.ev = dict(o.ev); s.vm = dict(o.vm); s.lg = dict(o.lg); s.dead = False; return
        for d, e in ((s.ev, o.ev), (s.vm, o.vm), (s.lg, o.lg)):
            for k, v in e.items(): d[k] = min(d.get(k, 1 << 30), v)
    def key(s): return (tuple(sorted(s.ev.items())), tuple(sorted(s.vm.items())), tuple(sorted(s.lg.items())), s.dead)
class Asm:
    def __init__(self): self.lines = []; self.nl = 0
    def __call__(self, s=""):
        for l in s.split("\n"):
            l = l.strip()
            if l: self.lines.append(l)
    def newlabel(self, base="L"):
        self.nl += 1; return f"{base}_{self.nl}"
    def text(self, verbose=False):
        I = [Ins(l) for l in self.lines]
        at = {}
        for it in range(12):
            changed = False; st = State()
            for idx, i in enumerate(I):
                if i.label:
                    if i.label in at: st.merge(at[i.label])
                    continue
                if i.kind == "none": continue
                if st.dead: st = State()
                touch = set(i.rd) | set(i.wr) | {("t", t) for t in i.tagr}
                def dst(k):
                    e = I[k]; return set(e.wr) | ({("t", e.tagw)} if e.tagw else set())
                nv = min([c for k, c in st.vm.items() if dst(k) & touch and not (i.kind == "vmem" and not (dst(k) & set(i.rd)))], default=None)
                nl = min([c for k, c in st.lg.items() if dst(k) & touch and not (i.kind == "ds" and I[k].kind == "ds" and not (dst(k) & set(i.rd)))], default=None)
                if nl is not None and any(I[k].kind == "smem" for k in st.lg): nl = 0
                ov, ol = getattr(i, "wv", None), getattr(i, "wl", None)
                if nv is not None: nv = min(nv, 63); ov = nv if ov is None else min(ov, nv)
                if nl is not None: nl = min(nl, 15); ol = nl if ol is None else min(ol, nl)
                if (ov, ol) != (getattr(i, "wv", None), getattr(i, "wl", None)): changed = True
                i.wv, i.wl = ov, ol
                if i.kind == "wait":
                    m = re.search(r"vmcnt\((\d+)\)", i.rest); ov = int(m.group(1)) if m else ov
                    m = re.search(r"lgkmcnt\((\d+)\)", i.rest); ol = int(m.group(1)) if m else ol
                if ov is not None: st.vm = {k: c for k, c in st.vm.items() if c < ov}
                if ol is not None:
                    if ol == 0: st.lg = {}
                    elif not any(I[k].kind == "smem" for k in st.lg): st.lg = {k: c for k, c in st.lg.items() if c < ol}
                ws = 1 if (i.wv is not None or i.wl is not None) and i.kind != "wait" else 0
                if i.kind == "pseudo":
                    st.ev = {k: a + ws for k, a in st.ev.items() if a + ws < 12}; continue
                n = max([need(I[k], i) - a - ws for k, a in st.ev.items()], default=0)
                if n > getattr(i, "nn", 0): i.nn = n; changed = True
                adv = ws + getattr(i, "nn", 0) + (i.nop if i.nop else 1)
                st.ev = {k: a + adv for k, a in st.ev.items() if a + adv < 12}
                if i.kind in ("valu", "mfma", "salu") or i.stdata: st.ev[idx] = 0
                if i.kind == "vmem":
                    st.vm = {k: c + 1 for k, c in st.vm.items()}; st.vm[idx] = 0
                    if "_lds_" in i.op: pass
                if i.kind in ("ds", "smem"):
                    st.lg = {k: c + 1 for k, c in st.lg.items()}; st.lg[idx] = 0
                if i.kind == "branch":
                    t = at.get(i.target)
                    if t is None: at[i.target] = st.copy(); changed = True
                    else:
                        k0 = t.key(); t.merge(st)
                        if t.key() != k0: changed = True
                    if i.op == "s_branch": st = State(); st.dead = True
                if i.kind == "end": st = State(); st.dead = True
            if not changed: break
        else: raise Exception("no fixpoint")
        out = []
        for i in I:
            if i.label: out.append(i.text); continue
            wv, wl = getattr(i, "wv", None), getattr(i, "wl", None)
            if (wv is not None or wl is not None) and i.kind != "wait":
                out.append("    s_waitcnt " + " ".join(([f"vmcnt({wv})"] if wv is not None else []) + ([f"lgkmcnt({wl})"] if wl is not None else [])))
            n = getattr(i, "nn", 0)
            while n > 0:
                out.append(f"    s_nop {min(n,8)-1}"); n -= 8
            if i.kind != "pseudo": out.append("    " + i.text)
        return "\n".join(out)
def wrap(body, grid, block, lds, vgpr=256, agpr=0, sgpr=102):
    accum = (vgpr + 3) // 4 * 4
    nfv = accum + agpr if agpr else vgpr
    return f"""; generated by my own generator script (exp/gen1.py)
; @launch grid=({grid},1,1) block=({block},1,1) lds={lds}
.amdgcn_target "amdgcn-amd-amdhsa--gfx950"
.text
.globl {KNAME}
.p2align 8
.type {KNAME},@function
{KNAME}:
{body}
.section .rodata,"a"
.p2align 6
.amdhsa_kernel {KNAME}
  .amdhsa_next_free_vgpr {nfv}
  .amdhsa_next_free_sgpr {sgpr}
  .amdhsa_accum_offset {accum}
  .amdhsa_group_segment_fixed_size 0
  .amdhsa_kernarg_size 128
  .amdhsa_user_sgpr_count 2
  .amdhsa_user_sgpr_kernarg_segment_ptr 1
  .amdhsa_system_sgpr_workgroup_id_x 1
.end_amdhsa_kernel
"""
```

```python
import sys
from asm2 import *
H1, Q1, ST, QA, MD, OP, AO, PT, STAMP = 0, 0x10000, 0x30000, 0x40000, 0x50000, 0x60000, 0x80000, 0x100000, 0x400000
SCR = 131072
MODF, HL, X1F, XH, HH, RED = SCR, SCR + 8192, SCR + 16896, SCR + 18944, SCR + 21120, SCR + 21504
QAS, PX, MX, LX = 135168, 152064, 160256, 160512
LDS = 160768
MF = "v_mfma_f32_16x16x32_bf16"
FALL, FP = 0x3FFFF0FF, 0xFF
DEF = dict(dbg=0, nt=1, stg=1, pre=0, tmo=1 << 16, codekb=28, fl=0)
def v4(n, p="v"): return f"{p}[{n}:{n+3}]"
def v2(n, p="v"): return f"{p}[{n}:{n+1}]"
class G:
    def __init__(s, **kw):
        s.p = dict(DEF); s.p.update(kw); s.a = Asm(); s.nt = " nt" if s.p["nt"] else ""
    def stamp(s, k):
        if s.p["dbg"]: s.a(f"s_memrealtime s[{70+2*k}:{71+2*k}]")
    def chk(s, regs, t):
        a = s.a; r = list(regs)
        if len(r) % 2 == 0: a(f"v_max_u32 v{t}, v{r[0]}, v{r[1]}"); r = r[2:]
        else: a(f"v_max3_u32 v{t}, v{r[0]}, v{r[1]}, v{r[2]}"); r = r[3:]
        for k in range(0, len(r), 2): a(f"v_max3_u32 v{t}, v{t}, v{r[k]}, v{r[k+1]}")
        a(f"v_cmp_eq_u32 vcc, -1, v{t}")
    def poll(s, loads, regs, t, issued=False):
        a = s.a; L, C, D = a.newlabel("PL"), a.newlabel("PC"), a.newlabel("PD")
        a(f"s_mov_b32 s69, {s.p['tmo']}")
        if issued: a(f"s_branch {C}")
        a(f"{L}:"); a(loads); a(f"{C}:")
        s.chk(regs, t)
        a(f"s_cbranch_vccz {D}\ns_sub_u32 s69, s69, 1\ns_cbranch_scc0 {L}\n{D}:")
    def flagload(s, va, vd):
        if s.p["fl"] & 1: return
        s.a(f"global_load_dword v{vd}, v{va}, s[32:33] sc1")
    def flagwait(s, va, vd, mask, issued=True):
        if s.p["fl"] & 1: return
        a = s.a; L, D = a.newlabel("FL"), a.newlabel("FD")
        ck = f"v_cmp_ne_u32 vcc, 0x01010101, v{vd}\ns_and_b32 s68, vcc_lo, {mask}\ns_cbranch_scc0 {D}"
        if issued: a(ck)
        a(f"s_mov_b32 s69, {s.p['tmo']}\n{L}:"); s.flagload(va, vd); a(ck)
        a(f"s_sub_u32 s69, s69, 1\ns_cbranch_scc0 {L}\n{D}:")
    def setflag(s, t0, t1):
        if s.p["fl"] & 2: return
        ex = "s_mov_b64 exec, 1" if not s.p["fl"] & 4 else "s_cmp_eq_u32 s38, 0\ns_cselect_b64 exec, 1, 0"
        s.a(f"""v_mov_b32 v{t0}, s2
        v_mov_b32 v{t1}, 1
        {ex}
        global_store_byte v{t0}, v{t1}, s[32:33] sc1
        s_mov_b64 exec, -1""")
    def masks(s, m, t, val=0xFFFF):
        a = s.a
        a(f"""v_and_b32 v{t}, 1, v2
        v_lshlrev_b32 v{t}, 4, v{t}
        v_mov_b32 v{m+3}, {val}
        v_lshlrev_b32 v{m+3}, v{t}, v{m+3}
        v_bfe_u32 v{t}, v2, 1, 2""")
        for q in range(4):
            a(f"v_cmp_eq_u32 vcc, {q}, v{t}\nv_cndmask_b32 v{m+q}, 0, v{m+3}, vcc")
    def ror(s, op, regs, amts):
        for n in amts:
            for r in regs: s.a(f"{op}_dpp v{r}, v{r}, v{r} row_ror:{n} row_mask:0xf bank_mask:0xf")
    def xrow(s, op, regs, tmps, which=(16, 32)):
        for w in which:
            for r, t in zip(regs, tmps): s.a(f"v_mov_b32 v{t}, v{r}")
            for r, t in zip(regs, tmps): s.a(f"v_permlane{w}_swap_b32 v{r}, v{t}")
            for r, t in zip(regs, tmps): s.a(f"{op} v{r}, v{r}, v{t}")
    def perm(s, src, dst, agpr=False, tmp=None):
        out = []
        for p in range(4):
            for i in range(8):
                d = dst + 4 * i + p; sel = "s67" if i & 1 else "s66"
                x, y = src + 4 * (2 * p + 1) + (i >> 1), src + 4 * (2 * p) + (i >> 1)
                if agpr: out.append(f"v_perm_b32 v{tmp+(i&1)}, v{x}, v{y}, {sel}\nv_accvgpr_write_b32 a{d}, v{tmp+(i&1)}")
                else: out.append(f"v_perm_b32 v{d}, v{x}, v{y}, {sel}")
        s.a("\n".join(out))
    def rstd(s, S, Q, t):
        s.a(f"""v_mul_f32 v{S}, 0x3b000000, v{S}
        v_mul_f32 v{t}, v{S}, v{S}
        v_fma_f32 v{Q}, v{Q}, s65, -v{t}
        v_max_f32 v{Q}, 0, v{Q}
        v_add_f32 v{Q}, 0x3727c5ac, v{Q}
        v_rsq_f32 v{Q}, v{Q}""")
    def prologue(s):
        a = s.a
        a("s_load_dwordx16 s[4:19], s[0:1], 0\ns_load_dwordx16 s[20:35], s[0:1], 64")
        s.stamp(0)
        a(f"""s_cmp_ge_u32 s2, 248
        s_cbranch_scc1 END
        v_lshrrev_b32 v1, 6, v0
        v_and_b32 v0, 63, v0
        s_and_b32 s36, s2, 7
        s_lshr_b32 s37, s2, 3
        v_readfirstlane_b32 s38, v1
        v_and_b32 v2, 15, v0
        v_lshrrev_b32 v3, 4, v0
        v_lshlrev_b32 v4, 4, v0
        v_lshlrev_b32 v1, 2, v0
        v_lshrrev_b32 v6, 3, v2
        v_and_b32 v7, 7, v2
        v_mov_b32 v28, -1
        s_mov_b32 s66, 0x05040100
        s_mov_b32 s67, 0x07060302
        s_mov_b32 s65, 0x3b000000
        s_cmp_ge_u32 s37, 15
        s_cbranch_scc1 ROLE_A
        s_cmp_ge_u32 s37, 7
        s_cbranch_scc1 ROLE_E
        s_cmp_ge_u32 s37, 4
        s_cbranch_scc1 ROLE_QI""")
    def uk_setup(s):
        s.a(f"""s_add_u32 s46, s10, s43
        s_addc_u32 s47, s11, 0
        v_lshlrev_b32 v26, 13, v3
        v_lshl_add_u32 v26, v2, 4, v26
        s_lshl_b32 s48, s38, 15""")
    def uk_dma(s, n):
        s.a(f"""v_xor_b32 v27, {((n & 15) << 4) | (n << 15)}, v26
        s_add_u32 m0, s48, {n*1024}
        global_load_lds_dwordx4 v27, s[46:47]{s.nt} ; @w:uk{n}""")
    def role_P(s):
        a = s.a; nt = s.nt
        a(f"""s_lshl_b32 s40, s37, 2
        s_add_u32 s40, s40, s38
        s_mul_i32 s41, s40, 196608
        s_lshl_b32 s42, s36, 7
        s_add_u32 s41, s41, s42
        s_add_u32 s41, s41, 3072
        v_mul_u32_u24 v5, 49152, v3
        v_lshl_add_u32 v5, v6, 10, v5
        v_lshl_add_u32 v5, v7, 4, v5
        s_lshl_b32 s43, s40, 6
        v_lshl_add_u32 v8, v6, 10, s43
        v_lshl_add_u32 v8, v3, 4, v8
        v_lshlrev_b32 v9, 5, v0
        v_lshrrev_b32 v10, 1, v3
        v_lshl_add_u32 v10, v10, 10, s42
        v_lshl_add_u32 v10, v7, 4, v10
        v_and_b32 v11, 1, v3
        v_lshl_add_u32 v10, v11, 3, v10
        s_lshl_b32 s43, s36, 10
        s_lshl_b32 s49, s37, 4
        s_add_u32 s43, s43, s49
        v_lshl_add_u32 v29, v7, 7, s43
        v_lshl_add_u32 v30, v6, 6, v29
        v_lshl_add_u32 v30, v3, 2, v30
        s_add_u32 s44, s28, s41
        s_addc_u32 s45, s29, 0
        global_load_dwordx4 v[12:15], v8, s[26:27]
        global_store_dword v30, v28, s[34:35] sc1 ; @w:clr""")
        for t in range(8):
            a(f"global_load_dwordx4 {v4(32+4*t)}, v5, s[44:45] offset:{3072 if t&1 else -3072}{nt}")
            if t == 1: a("global_load_dwordx4 v[16:19], v9, s[4:5]\nglobal_load_dwordx4 v[20:23], v9, s[4:5] offset:16\nglobal_load_dwordx2 v[24:25], v10, s[4:5]")
            if t & 1 and t < 7: a("v_add_u32 v5, 12288, v5")
        a(f"""s_and_b32 s50, s2, 15
        s_lshr_b32 s51, s2, 4
        s_lshl_b32 s43, s51, 2
        s_add_u32 s43, s43, s38
        s_lshl_b32 s52, s43, 7
        s_lshl_b32 s43, s43, 19
        s_lshl_b32 s49, s50, 8
        s_add_u32 s43, s43, s49""")
        s.uk_setup()
        for n in range(s.p["pre"]): s.uk_dma(n)
        s.masks(96, 8)
        a("WAIT clr\ns_barrier"); s.setflag(8, 9)
        s.stamp(1)
        for t in range(8):
            src = 12 + (t >> 1)
            a(f"v_and_b32 v{100+t}, 0xffff0000, v{src}" if t & 1 else f"v_lshlrev_b32 v{100+t}, 16, v{src}")
        for t in range(8): a(f"v_mul_f32 v{108+t}, 0xbfb8aa3b, v{100+t}")
        for t in range(8): a(f"v_exp_f32 v{108+t}, v{108+t}")
        for t in range(8): a(f"v_add_f32 v{108+t}, 1.0, v{108+t}")
        for t in range(8): a(f"v_rcp_f32 v{108+t}, v{108+t}")
        for t in range(8): a(f"v_mul_f32 v{100+t}, v{100+t}, v{108+t}")
        for t in range(8): a(f"v_cvt_pk_bf16_f32 v{100+t}, v{100+t}, v{100+t}")
        for t in range(8):
            for q in range(4): a(f"v_and_b32 v{64+4*t+q}, v{96+q}, v{100+t}")
        a("v_mov_b32 v8, 0\nv_mov_b32 v9, 0\nv_mov_b32 v10, 0x3f803f80")
        for k in range(8): a(f"v_dot2c_f32_bf16 v8, v{16+k}, v10\nv_dot2c_f32_bf16 v9, v{16+k}, v{16+k}")
        s.ror("v_add_f32", [8, 9], [8, 4, 2, 1]); s.xrow("v_add_f32", [8, 9], [10, 11], (16,))
        s.rstd(8, 9, 10)
        a(f"""v_lshlrev_b32 v16, 16, v24
        v_and_b32 v17, 0xffff0000, v24
        v_lshlrev_b32 v18, 16, v25
        v_and_b32 v19, 0xffff0000, v25
        v_cmp_le_u32 vcc, 8, v2
        s_cmp_eq_u32 s40, 0
        s_cselect_b32 s49, 1.0, 0
        v_mov_b32 v20, s49""")
        for r in range(4): a(f"v_sub_f32 v{16+r}, v{16+r}, v8\nv_mul_f32 v{16+r}, v{16+r}, v9\nv_cndmask_b32 v{16+r}, 1.0, v{16+r}, vcc\nv_cndmask_b32 v{12+r}, 0, v20, vcc")
        a(f"""s_lshl_b32 s49, s38, 10
        s_add_u32 s49, s49, {RED}
        v_add_u32 v21, s49, v4
        v_add_u32 v22, {RED}, v4
        v_lshrrev_b32 v23, 1, v3
        v_lshl_add_u32 v29, v23, 6, v29
        v_and_b32 v23, 1, v3
        v_lshl_add_u32 v29, v23, 3, v29""")
        for t in range(8): a(f"{MF} v[12:15], {v4(64+4*t)}, {v4(32+4*t)}, v[12:15]")
        a("v_pk_mul_f32 v[12:13], v[12:13], v[16:17]\nv_pk_mul_f32 v[14:15], v[14:15], v[18:19]")
        L = a.newlabel("P1")
        a(f"""ds_write_b128 v21, v[12:15]
        s_waitcnt lgkmcnt(0)
        s_barrier
        s_cmp_lg_u32 s38, 0
        s_cbranch_scc1 {L}""")
        for w in range(1, 4): a(f"ds_read_b128 {v4(32+4*w)}, v22 offset:{1024*w}")
        a("""v_pk_add_f32 v[12:13], v[12:13], v[36:37]
        v_pk_add_f32 v[14:15], v[14:15], v[38:39]
        v_pk_add_f32 v[40:41], v[40:41], v[44:45]
        v_pk_add_f32 v[42:43], v[42:43], v[46:47]
        v_pk_add_f32 v[12:13], v[12:13], v[40:41]
        v_pk_add_f32 v[14:15], v[14:15], v[42:43]""")
        s.ror("v_add_f32", [12, 13, 14, 15], [8])
        a(f"""v_cvt_pk_bf16_f32 v12, v12, v13
        v_cvt_pk_bf16_f32 v13, v14, v15
        s_mov_b32 exec_lo, 0x00ff00ff
        s_mov_b32 exec_hi, 0x00ff00ff
        global_store_dwordx2 v29, v[12:13], s[34:35] sc1
        s_mov_b64 exec, -1
        {L}:""")
        s.stamp(2)
        for n in range(s.p["pre"], 16): s.uk_dma(n)
        s.p2b(1)
        a(f"""s_mul_i32 s41, s40, 196608
        s_lshl_b32 s42, s36, 9
        s_add_u32 s41, s41, s42
        s_add_u32 s41, s41, {2048+3072}
        s_add_u32 s44, s28, s41
        s_addc_u32 s45, s29, 0
        v_mul_u32_u24 v5, 49152, v3
        v_lshl_add_u32 v5, v2, 4, v5""")
        for t in range(8):
            for u in range(2): a(f"global_load_dwordx4 {v4(128+32*u+4*t)}, v5, s[44:45] offset:{(3072 if t&1 else -3072)+256*u}{nt}")
            if t & 1 and t < 7: a("v_add_u32 v5, 12288, v5")
        s.g_w1dma()
        for t in range(8):
            for u in range(2): a(f"{MF} {v4(12+4*u)}, {v4(64+4*t)}, {v4(128+32*u+4*t)}, {v4(12+4*u) if t else 0}")
        L = a.newlabel("R")
        a(f"""ds_write_b128 v21, v[12:15]
        ds_write_b128 v21, v[16:19] offset:4096
        v_bfe_u32 v22, v0, 1, 4
        v_and_b32 v23, 1, v0
        v_lshl_add_u32 v22, v23, 4, v22
        v_and_b32 v23, 32, v0
        v_add_u32 v22, v22, v23
        s_lshl_b32 s49, s38, 12
        s_add_u32 s49, s49, {RED}
        v_lshl_add_u32 v22, v22, 4, s49
        s_lshl_b32 s41, s37, 14
        s_lshl_b32 s42, s36, 10
        s_add_u32 s41, s41, s42
        s_lshl_b32 s42, s38, 9
        s_add_u32 s41, s41, s42
        s_add_u32 s41, s41, {MD}
        v_lshl_add_u32 v24, v23, 8, s41
        v_and_b32 v23, 31, v0
        v_lshl_add_u32 v24, v23, 4, v24
        s_waitcnt lgkmcnt(0)
        s_barrier
        s_cmp_ge_u32 s38, 2
        s_cbranch_scc1 {L}""")
        for w in range(4): a(f"ds_read_b128 {v4(32+4*w)}, v22 offset:{1024*w}")
        a(f"""v_pk_add_f32 v[32:33], v[32:33], v[36:37]
        v_pk_add_f32 v[34:35], v[34:35], v[38:39]
        v_pk_add_f32 v[40:41], v[40:41], v[44:45]
        v_pk_add_f32 v[42:43], v[42:43], v[46:47]
        v_pk_add_f32 v[32:33], v[32:33], v[40:41]
        v_pk_add_f32 v[34:35], v[34:35], v[42:43]
        global_store_dwordx4 v24, v[32:35], s[34:35] sc1
        {L}:
        s_branch G_MAIN""")
    def p2b(s, nb):
        a = s.a
        s.flagload(1, 31)
        a(f"""v_lshl_add_u32 v8, v7, 1, v6
        v_lshl_add_u32 v9, v8, 10, s48
        v_xor_b32 v8, v3, v8""")
        for st in range(4): a(f"v_xor_b32 v10, {4*st}, v8\nv_lshl_add_u32 v{12+st}, v10, 4, v9")
        a(f"""s_lshl_b32 s49, s50, 12
        s_add_u32 s49, s49, {Q1}
        v_add_u32 v10, s49, v4
        s_lshl_b32 s49, s50, 10
        s_add_u32 s49, s49, s52
        s_add_u32 s49, s49, {QA}
        v_lshrrev_b32 v11, 1, v3
        v_lshl_add_u32 v11, v11, 15, s49
        v_lshl_add_u32 v11, v7, 4, v11
        s_mov_b32 s64, 0x3e0293ee""")
        for blk in range(nb):
            a(f"WAIT uk{16*blk+15}")
            for t in range(4):
                for st in range(4): a(f"ds_read_b128 {v4(128+64*blk+16*t+4*st)}, v{12+st} offset:{16384*blk+256*t}")
        s.flagwait(1, 31, FALL)
        s.stamp(3)
        s.poll("\n".join(f"global_load_dwordx4 {v4(32+4*st)}, v10, s[34:35] offset:{1024*st} sc1" for st in range(4)), range(32, 48), 8)
        s.stamp(4)
        for blk in range(nb):
            D = 48 if blk == 0 else 100
            for st in range(4):
                for t in range(4): a(f"{MF} {v4(D+4*t)}, {v4(32+4*st)}, {v4(128+64*blk+16*t+4*st)}, {v4(D+4*t) if st else 0}")
        for blk in range(nb):
            D = 48 if blk == 0 else 100
            for t in range(4): a(f"v_pk_add_f32 {v2(D+4*t)}, {v2(D+4*t)}, {v2(D+4*t+2)}")
            for t in range(4): a(f"v_add_f32 v{D+4*t}, v{D+4*t}, v{D+4*t+1}")
            s.xrow("v_add_f32", [D + 4 * t for t in range(4)], [D + 4 * t + 1 for t in range(4)], (16,))
            for t in range(4): a(f"v_mul_f32 v{D+4*t}, s64, v{D+4*t}")
            a(f"""v_cvt_pk_bf16_f32 v{D}, v{D}, v{D+4}
            v_cvt_pk_bf16_f32 v{D+1}, v{D+8}, v{D+12}
            v_mov_b32_dpp v{D+2}, v{D} row_ror:8 row_mask:0xf bank_mask:0xf
            v_mov_b32_dpp v{D+3}, v{D+1} row_ror:8 row_mask:0xf bank_mask:0xf
            s_mov_b32 exec_lo, 0xff
            s_mov_b32 exec_hi, 0xff
            global_store_dwordx4 v11, {v4(D)}, s[34:35] offset:{128*blk} sc1
            s_mov_b64 exec, -1""")
        s.stamp(5)
    def role_QI(s):
        a = s.a
        a(f"""ROLE_QI:
        s_cmp_eq_u32 s37, 6
        s_cbranch_scc1 ROLE_I
        s_sub_u32 s50, s2, 16
        s_lshl_b32 s52, s38, 8
        s_lshl_b32 s43, s38, 20
        s_lshl_b32 s49, s50, 8
        s_add_u32 s43, s43, s49""")
        s.uk_setup()
        for n in range(32): s.uk_dma(n)
        s.p2b(2)
        s.g_w1dma()
        a("s_branch G_MAIN")
    def role_I(s):
        a = s.a
        a(f"""ROLE_I:
        s_getpc_b64 s[40:41]
        PC0:
        s_sub_u32 s40, s40, PC0-{KNAME}
        s_subb_u32 s41, s41, 0
        s_lshl_b32 s42, s38, 10
        v_add_u32 v5, s42, v4""")
        for k in range(s.p["codekb"] // 4):
            a(f"v_min_u32 v8, CODE_END-{KNAME}-16, v5\nglobal_load_dwordx4 {v4(32+4*k)}, v8, s[40:41]\nv_add_u32 v5, 4096, v5")
        a(f"""s_lshl_b32 s42, s36, 15
        s_lshl_b32 s43, s38, 13
        s_add_u32 s42, s42, s43
        s_add_u32 s42, s42, {QA+4096}
        v_add_u32 v5, s42, v4
        v_mov_b32 v29, -1
        v_mov_b32 v30, -1
        v_mov_b32 v31, -1""")
        for k in range(8): a(f"global_store_dwordx4 v5, v[28:31], s[34:35] offset:{1024*k-4096} sc1 ; @w:clrI")
        a("WAIT clrI\ns_barrier"); s.setflag(8, 9)
        s.stamp(1)
        s.g_w1dma()
        s.flagwait(1, 31, FALL, issued=False)
    def g_w1dma(s):
        a = s.a
        a(f"""s_mul_i32 s53, s36, 7
        s_add_u32 s53, s53, s37
        s_and_b32 s54, s53, 1
        s_lshr_b32 s55, s53, 1
        s_mul_i32 s41, s38, {128*3584}
        s_lshl_b32 s42, s55, 7
        s_add_u32 s41, s41, s42
        s_add_u32 s46, s18, s41
        s_addc_u32 s47, s19, 0
        v_lshrrev_b32 v26, 3, v0
        v_mul_u32_u24 v26, 3584, v26
        v_lshl_add_u32 v26, v7, 4, v26
        s_lshl_b32 s48, s38, 15""")
        for n in range(16):
            a(f"s_add_u32 m0, s48, {n*1024}\nglobal_load_lds_dwordx4 v26, s[46:47]{s.nt} ; @w:w1\nv_add_u32 v26, {8*3584}, v26")
    def g_main(s):
        a = s.a; nt = s.nt
        a(f"""G_MAIN:
        s_lshl_b32 s41, s55, 16
        s_lshl_b32 s42, s38, 8
        s_add_u32 s41, s41, s42
        s_add_u32 s41, s41, 4096
        s_add_u32 s44, s22, s41
        s_addc_u32 s45, s23, 0
        v_lshlrev_b32 v5, 13, v3
        v_lshl_add_u32 v5, v2, 4, v5""")
        for st in range(2):
            for r in range(8): a(f"global_load_dwordx4 {v4(64+32*st+4*r)}, v5, s[44:45] offset:{1024*r-4096}{nt}")
            if st == 0: a("v_add_u32 v5, 32768, v5")
        a(f"""v_and_b32 v8, 1, v3
        v_lshlrev_b32 v9, 4, v2
        v_lshl_add_u32 v9, v8, 3, v9
        v_add_u32 v9, s42, v9
        s_lshl_b32 s43, s54, 10
        v_add_u32 v10, s43, v9
        global_load_dwordx2 v[24:25], v10, s[4:5]
        s_lshl_b32 s41, s55, 7
        s_lshl_b32 s49, s38, 5
        s_add_u32 s41, s41, s49
        v_lshl_add_u32 v10, v2, 1, s41
        global_load_ushort v22, v10, s[20:21]
        s_and_b32 s56, s55, 15
        s_lshr_b32 s41, s56, 2
        s_lshl_b32 s41, s41, 8
        s_and_b32 s49, s56, 1
        s_lshl_b32 s49, s49, 7
        s_add_u32 s41, s41, s49
        s_and_b32 s49, s56, 2
        s_lshl_b32 s49, s49, 2
        s_add_u32 s41, s41, s49
        v_lshl_add_u32 v23, v7, 4, s41
        global_load_dwordx2 v[20:21], v23, s[24:25]
        v_lshrrev_b32 v10, 2, v2
        v_lshl_add_u32 v10, v3, 3, v10
        v_lshlrev_b32 v10, 7, v10
        v_and_b32 v11, 3, v2
        v_lshl_add_u32 v10, v11, 3, v10
        s_lshl_b32 s49, s38, 5
        v_add_u32 v10, s49, v10
        v_add_u32 v11, 65536, v10
        WAIT w1
        s_barrier""")
        for st in range(16):
            for h in range(2): a(f"ds_read_b64_tr_b16 {v2(128+4*st+2*h)}, v{10+(st>>3)} offset:{((st>>2)&1)*32768+(st&3)*4096+h*512}")
        s.perm(64, 192); s.perm(96, 224)
        s.stamp(6)
        a(f"""s_lshl_b32 s41, s54, 13
        s_lshl_b32 s49, s38, 11
        s_add_u32 s41, s41, s49
        s_add_u32 s41, s41, {MD}
        v_add_u32 v12, s41, v4
        v_add_u32 v13, 16384, v12
        v_add_u32 v14, 32768, v12
        v_add_u32 v15, 49152, v12""")
        s.poll("\n".join(f"global_load_dwordx4 {v4(64+8*k+4*u)}, v{12+k}, s[34:35] offset:{1024*u} sc1" for k in range(4) for u in range(2)), range(64, 96), 8)
        for q in range(4): a(f"v_pk_add_f32 {v2(64+2*q)}, {v2(64+2*q)}, {v2(72+2*q)}\nv_pk_add_f32 {v2(80+2*q)}, {v2(80+2*q)}, {v2(88+2*q)}\nv_pk_add_f32 {v2(64+2*q)}, {v2(64+2*q)}, {v2(80+2*q)}")
        a("s_cmp_eq_u32 s38, 2\ns_cselect_b32 s41, 1.0, 0")
        for q in range(8): a(f"v_add_f32 v{64+q}, s41, v{64+q}")
        a(f"""s_add_u32 s49, s49, {MODF}
        v_add_u32 v12, s49, v4
        ds_write_b128 v12, v[64:67]
        ds_write_b128 v12, v[68:71] offset:1024
        s_mul_i32 s49, s38, 2176
        s_add_u32 s49, s49, {HL}
        v_lshl_add_u32 v12, v0, 3, s49""")
        for q in range(4): a(f"v_cvt_pk_bf16_f32 v{72+q}, v{64+2*q}, v{65+2*q}")
        for q in range(4): a(f"v_lshlrev_b32 v80, 16, v{72+q}\nv_and_b32 v81, 0xffff0000, v{72+q}\nv_sub_f32 v80, v{64+2*q}, v80\nv_sub_f32 v81, v{65+2*q}, v81\nv_cvt_pk_bf16_f32 v{76+q}, v80, v81")
        a(f"""ds_write_b64 v12, v[72:73]
        ds_write_b64 v12, v[74:75] offset:512
        ds_write_b64 v12, v[76:77] offset:1088
        ds_write_b64 v12, v[78:79] offset:1600
        v_and_b32 v12, 3, v2
        v_mul_u32_u24 v12, 1088, v12
        v_lshl_add_u32 v12, v3, 4, v12
        v_add_u32 v12, {HL+2176}, v12
        v_lshlrev_b32 v13, 1, v9
        v_add_u32 v13, {MODF}, v13
        v_lshlrev_b32 v14, 5, v0
        v_add_u32 v14, {MODF}, v14
        v_lshlrev_b32 v15, 1, v23
        v_add_u32 v15, {MODF}, v15
        v_mov_b32 v60, 0x3f803f80
        v_mov_b32 v61, 0x3f803f80
        v_mov_b32 v62, 0x3f803f80
        v_mov_b32 v63, 0x3f803f80
        s_waitcnt lgkmcnt(0)
        s_barrier""")
        for st in range(16): a(f"ds_read_b128 {v4(64+4*st)}, v12 offset:{64*st}")
        for st in range(16):
            a(f"{MF} v[56:59], v[60:63], {v4(128+4*st)}, {'v[56:59]' if st else 0}")
            a(f"{MF} v[52:55], {v4(64+4*st)}, {v4(128+4*st)}, {'v[52:55]' if st else 0}")
        a(f"""ds_read_b128 v[32:35], v13
        ds_read_b128 v[36:39], v13 offset:4096
        ds_read_b128 v[40:43], v14 offset:2048
        ds_read_b128 v[44:47], v14 offset:2064
        ds_read_b128 v[16:19], v15 offset:6144
        v_add_f32 v52, v52, v53
        v_add_f32 v53, v54, v55
        v_mov_b32 v54, v56
        v_lshlrev_b32 v22, 16, v22
        ds_read_b128 v[56:59], v14 offset:4096
        ds_read_b128 v[60:63], v14 offset:4112""")
        s.masks(48, 8, 0x3f80)
        a(f"""v_lshlrev_b32 v26, 16, v24
        v_and_b32 v27, 0xffff0000, v24
        v_lshlrev_b32 v28, 16, v25
        v_and_b32 v29, 0xffff0000, v25
        s_lshl_b32 s41, s54, 15
        s_add_u32 s41, s41, s42
        s_add_u32 s41, s41, {AO}
        v_lshlrev_b32 v5, 10, v3
        v_lshl_add_u32 v5, v2, 4, v5
        v_add_u32 v5, s41, v5""")
        for q in range(4): a(f"v_add_u32 v{104+q}, {8192*q+4096}, v5")
        a(f"""v_lshrrev_b32 v10, 1, v3
        v_mul_u32_u24 v10, 1088, v10
        v_add_u32 v10, v9, v10
        v_add_u32 v10, {XH}, v10
        v_and_b32 v11, 1, v2
        v_mul_u32_u24 v11, 1088, v11
        v_lshl_add_u32 v11, v3, 4, v11
        v_add_u32 v11, {XH}, v11
        v_cmp_le_u32 s[58:59], 32, v0
        v_and_b32 v8, 16, v0
        v_cmp_ne_u32 s[60:61], 0, v8
        s_lshl_b32 s49, s38, 5
        s_add_u32 s49, s49, {HH}
        v_lshl_add_u32 v24, v2, 1, s49
        v_lshlrev_b32 v25, 4, v3
        v_add_u32 v25, {HH}, v25
        s_mul_i32 s57, s54, 28
        s_add_u32 s41, s57, s55
        s_lshl_b32 s41, s41, 11
        s_lshl_b32 s49, s38, 9
        s_add_u32 s41, s41, s49
        s_add_u32 s41, s41, {OP}
        v_add_u32 v30, s41, v4
        s_mov_b32 s62, 0xbdd2d3e8
        v_mov_b32 v55, 0xc0135761
        s_waitcnt lgkmcnt(0)""")
        s.stamp(7)
        s.poll("\n".join(f"global_load_dwordx4 {v4(64+4*q)}, v{104+(q>>1)}, s[34:35] offset:{0 if q&1 else -4096} sc1" for q in range(8)), range(64, 96), 8)
        s.stamp(8)
        for q in range(8): a(f"{MF} {v4(96+4*(q&1))}, v[48:51], {v4(64+4*q)}, {v4(96+4*(q&1)) if q>1 else 0}")
        a("""v_pk_add_f32 v[96:97], v[96:97], v[100:101]
        v_pk_add_f32 v[98:99], v[98:99], v[102:103]
        v_pk_fma_f32 v[96:97], v[96:97], v[32:33], v[26:27]
        v_pk_fma_f32 v[98:99], v[98:99], v[34:35], v[28:29]
        v_pk_mul_f32 v[100:101], v[96:97], v[36:37]
        v_pk_mul_f32 v[102:103], v[98:99], v[38:39]""")
        a(f"ds_write_b128 v13, v[96:99] offset:{X1F-MODF}")
        a("""v_cvt_pk_bf16_f32 v104, v100, v101
        v_cvt_pk_bf16_f32 v105, v102, v103
        v_lshlrev_b32 v106, 16, v104
        v_and_b32 v107, 0xffff0000, v104
        v_lshlrev_b32 v108, 16, v105
        v_and_b32 v109, 0xffff0000, v105
        v_pk_add_f32 v[100:101], v[100:101], v[106:107] neg_lo:[0,1] neg_hi:[0,1]
        v_pk_add_f32 v[102:103], v[102:103], v[108:109] neg_lo:[0,1] neg_hi:[0,1]
        v_cvt_pk_bf16_f32 v106, v100, v101
        v_cvt_pk_bf16_f32 v107, v102, v103
        v_cndmask_b32 v104, v104, v106, s[58:59]
        v_cndmask_b32 v105, v105, v107, s[58:59]
        ds_write_b64 v10, v[104:105]
        s_waitcnt lgkmcnt(0)
        s_barrier""")
        a(f"ds_read_b128 v[32:35], v14 offset:{X1F-MODF}\nds_read_b128 v[36:39], v14 offset:{X1F-MODF+16}")
        for st in range(16): a(f"ds_read_b128 {v4(64+4*st)}, v11 offset:{64*st}")
        V = Asm(); sa = s.a; s.a = V
        def sums(R):
            V(f"v_pk_add_f32 v[26:27], {v2(R)}, {v2(R+2)}\nv_pk_mul_f32 v[28:29], {v2(R)}, {v2(R)}")
            V(f"v_pk_add_f32 v[26:27], v[26:27], {v2(R+4)}\nv_pk_fma_f32 v[28:29], {v2(R+2)}, {v2(R+2)}, v[28:29]")
            V(f"v_pk_add_f32 v[26:27], v[26:27], {v2(R+6)}\nv_pk_fma_f32 v[28:29], {v2(R+4)}, {v2(R+4)}, v[28:29]")
            V(f"v_add_f32 v26, v26, v27\nv_pk_fma_f32 v[28:29], {v2(R+6)}, {v2(R+6)}, v[28:29]\nv_add_f32 v28, v28, v29")
            s.ror("v_add_f32", [26, 28], [8, 4, 2, 1]); s.xrow("v_add_f32", [26, 28], [27, 29])
            s.rstd(26, 28, 27)
        sums(32)
        for q in range(4): V(f"v_pk_add_f32 {v2(32+2*q)}, {v2(32+2*q)}, v[26:27] op_sel_hi:[1,0] neg_lo:[0,1] neg_hi:[0,1]")
        for q in range(4): V(f"v_pk_mul_f32 {v2(56+2*q)}, {v2(56+2*q)}, v[28:29] op_sel_hi:[1,0]")
        V("v_mul_f32 v53, v53, v26\nv_mov_b32 v31, v28")
        for q in range(4): V(f"v_pk_fma_f32 {v2(32+2*q)}, {v2(32+2*q)}, {v2(56+2*q)}, {v2(40+2*q)}")
        sums(32)
        V("v_fma_f32 v52, -v26, v54, v52")
        s.a = sa
        vl = V.lines; k = 0; per = (len(vl) + 15) // 16
        for st in range(16):
            for x in vl[k:k+per]: a(x)
            k += per
            a(f"{MF} {v4(44+4*(st&1)) if 0 else v4(48 if st&1 else 8)}, {v4(64+4*st)}, {v4(128+4*st)}, {v4(48 if st&1 else 8) if st>1 else 0}")
        a(f"""v_add_f32 v8, v8, v9
        v_add_f32 v48, v48, v49
        v_sub_f32 v8, v8, v53
        v_add_f32 v8, v8, v48
        v_fma_f32 v8, v8, v31, v52
        v_fma_f32 v8, v8, v28, v22
        v_mul_f32 v9, v8, v8
        v_fma_f32 v9, v9, s62, v55
        v_mul_f32 v9, v9, v8
        v_exp_f32 v9, v9
        v_add_f32 v9, 1.0, v9
        v_rcp_f32 v9, v9
        v_mul_f32 v8, v8, v9
        v_cvt_pk_bf16_f32 v8, v8, v8
        ds_write_b16 v24, v8
        s_waitcnt lgkmcnt(0)
        s_barrier
        ds_read_b128 v[32:35], v25
        ds_read_b128 v[36:39], v25 offset:64""")
        for st in range(2):
            for i in (0, 4, 1, 5, 2, 6, 3, 7): a(f"{MF} {v4(64+4*i)}, {v4(32+4*st)}, {v4(192+32*st+4*i)}, {v4(64+4*i) if st else 0}")
        for r in range(4): a(f"v_cndmask_b32 v{40+r}, v{64+4*r}, v{80+4*r}, s[60:61]")
        a("""s_mov_b32 exec_hi, 0
        global_store_dwordx4 v30, v[40:43], s[34:35] sc1
        s_mov_b32 exec_hi, -1""")
        s.stamp(9)
        a(f"""s_cmp_lg_u32 s38, 0
        s_cbranch_scc1 FIN
        s_cmp_ge_u32 s55, 16
        s_cbranch_scc1 FIN
        s_lshl_b32 s41, s57, 11
        s_lshl_b32 s49, s55, 7
        s_add_u32 s41, s41, s49
        s_add_u32 s41, s41, {OP}
        v_lshrrev_b32 v8, 3, v0
        v_lshl_add_u32 v9, v7, 4, s41
        v_lshl_add_u32 v10, v8, 11, v9
        v_add_u32 v11, 16384, v10
        v_add_u32 v12, 32768, v10
        v_and_b32 v8, 3, v8
        v_lshl_add_u32 v13, v8, 11, v9
        v_add_u32 v13, 49152, v13
        ds_read_b128 v[32:35], v15 offset:{X1F-MODF}
        v_lshlrev_b32 v36, 16, v20
        v_and_b32 v37, 0xffff0000, v20
        v_lshlrev_b32 v38, 16, v21
        v_and_b32 v39, 0xffff0000, v21
        v_add_u32 v23, s43, v23
        v_pk_fma_f32 v[32:33], v[36:37], v[16:17], v[32:33]
        v_pk_fma_f32 v[34:35], v[38:39], v[18:19], v[34:35]""")
        s.poll("\n".join(f"global_load_dwordx4 {v4(64+4*q)}, v{10+q}, s[34:35] sc1" for q in range(4)), range(64, 80), 8)
        s.stamp(10)
        a("""v_pk_add_f32 v[64:65], v[64:65], v[68:69]
        v_pk_add_f32 v[66:67], v[66:67], v[70:71]
        s_mov_b32 exec_hi, 0
        v_pk_add_f32 v[72:73], v[72:73], v[76:77]
        v_pk_add_f32 v[74:75], v[74:75], v[78:79]
        s_mov_b32 exec_hi, -1
        v_pk_add_f32 v[64:65], v[64:65], v[72:73]
        v_pk_add_f32 v[66:67], v[66:67], v[74:75]""")
        s.ror("v_add_f32", [64, 65, 66, 67], [8]); s.xrow("v_add_f32", [64, 65, 66, 67], [68, 69, 70, 71])
        a("""v_pk_fma_f32 v[32:33], v[64:65], v[16:17], v[32:33]
        v_pk_fma_f32 v[34:35], v[66:67], v[18:19], v[34:35]
        v_cvt_pk_bf16_f32 v32, v32, v33
        v_cvt_pk_bf16_f32 v33, v34, v35
        s_mov_b64 exec, 0xff
        global_store_dwordx2 v23, v[32:33], s[30:31]
        s_mov_b64 exec, -1""")
        s.stamp(11)
        a("s_branch FIN")
    def role_E(s):
        a = s.a; nt = s.nt
        EB, EX = 0, 4096
        a(f"""ROLE_E:
        s_sub_u32 s40, s37, 7
        s_and_b32 s54, s40, 1
        s_lshr_b32 s40, s40, 1
        s_lshl_b32 s40, s40, 3
        s_add_u32 s50, s40, s36
        s_lshl_b32 s41, s38, 20
        s_lshl_b32 s42, s50, 8
        s_add_u32 s41, s41, s42
        s_lshl_b32 s43, s54, 7
        s_add_u32 s43, s43, s41
        v_lshlrev_b32 v5, 16, v3
        v_lshl_add_u32 v5, v6, 18, v5
        v_lshl_add_u32 v5, v7, 4, v5
        s_add_u32 s44, s8, s43
        s_addc_u32 s45, s9, 0
        s_add_u32 s46, s44, 8192
        s_addc_u32 s47, s45, 0""")
        for kk in range(2):
            for r in range(8):
                a(f"global_load_dwordx4 {v4(64+32*kk+4*r)}, v5, s[{46 if r&1 else 44}:{47 if r&1 else 45}]{nt}")
                if r & 1 and (kk, r) != (1, 7): a(f"v_add_u32 v5, {16384 if r<7 else (64-6)*8192}, v5")
        s.flagload(1, 27)
        a(f"""v_mov_b32 v29, -1
        v_mov_b32 v30, -1
        v_mov_b32 v31, -1
        s_lshl_b32 s43, s50, 12
        s_lshl_b32 s49, s54, 11
        s_add_u32 s43, s43, s49
        s_add_u32 s43, s43, {Q1}
        s_lshl_b32 s49, s38, 9
        s_add_u32 s49, s49, s43
        v_lshl_add_u32 v8, v0, 3, s49
        global_store_dwordx2 v8, v[28:29], s[34:35] sc1
        s_lshl_b32 s51, s54, 5
        s_add_u32 s51, s51, s50
        s_lshl_b32 s52, s51, 10
        s_lshl_b32 s49, s38, 8
        s_add_u32 s52, s52, s49
        s_add_u32 s52, s52, {AO}
        v_add_u32 v8, s52, v1
        global_store_dword v8, v28, s[34:35] sc1
        s_lshl_b32 s53, s51, 8
        s_add_u32 s53, s53, {ST}
        v_add_u32 v8, s53, v1
        global_store_dword v8, v28, s[34:35] sc1
        s_lshr_b32 s55, s51, 4
        s_lshl_b32 s55, s55, 19
        s_and_b32 s49, s50, 15
        s_lshl_b32 s49, s49, 10
        s_add_u32 s55, s55, s49
        s_add_u32 s55, s55, {PT}
        s_lshl_b32 s49, s38, 17
        s_add_u32 s49, s49, s55
        v_add_u32 v8, s49, v4""")
        for k in range(8):
            a(f"global_store_dwordx4 v8, v[28:31], s[34:35] sc1 ; @w:clrE")
            if k < 7: a("v_add_u32 v8, 16384, v8")
        a(f"""s_lshl_b32 s49, s38, 11
        v_lshl_add_u32 v9, v6, 9, s49
        v_lshl_add_u32 v9, v3, 7, v9
        v_lshl_add_u32 v9, v7, 4, v9
        s_lshl_b32 s49, s38, 5
        s_add_u32 s49, s49, s43
        v_lshl_add_u32 v10, v7, 8, s49
        v_and_b32 v11, 1, v3
        v_lshl_add_u32 v10, v11, 7, v10
        v_lshl_add_u32 v10, v6, 4, v10""")
        s.perm(64, 128); s.perm(96, 160)
        s.stamp(1)
        s.flagwait(1, 27, FP)
        h1 = "global_load_dwordx4 v[12:15], v9, s[34:35] sc1\nglobal_load_dwordx4 v[16:19], v9, s[34:35] offset:1024 sc1"
        a(h1)
        a("WAIT clrE\ns_barrier"); s.setflag(20, 21)
        s.stamp(2)
        s.poll(h1, range(12, 20), 8, issued=True)
        s.stamp(3)
        for kk in range(2):
            for i in range(8): a(f"{MF} {v4(32+4*i)}, {v4(12+4*kk)}, {v4(128+32*kk+4*i)}, {v4(32+4*i) if kk else 0}")
        a(f"""s_add_u32 s44, s12, s41
        s_addc_u32 s45, s13, 0
        s_lshl_b32 s49, s54, 15
        v_lshl_add_u32 v5, v3, 13, s49
        v_lshl_add_u32 v5, v2, 4, v5""")
        for i in range(8): a(f"v_pk_add_f32 {v2(32+4*i)}, {v2(32+4*i)}, {v2(34+4*i)}\nv_add_f32 v{32+4*i}, v{32+4*i}, v{33+4*i}")
        for q in range(4): a(f"v_cvt_pk_bf16_f32 v{12+q}, v{32+8*q}, v{36+8*q}")
        a("""s_mov_b32 exec_lo, 0x00ff00ff
        s_mov_b32 exec_hi, 0xff00ff00
        global_store_dwordx4 v10, v[12:15], s[34:35] sc1
        s_mov_b64 exec, -1""")
        s.stamp(4)
        a(f"""s_lshl_b32 s41, s50, 17
        s_lshl_b32 s49, s38, 8
        s_add_u32 s41, s41, s49
        s_add_u32 s41, s41, 4096
        s_add_u32 s46, s14, s41
        s_addc_u32 s47, s15, 0""")
        def ld(n):
            T = 32 + 32 * (n % 3)
            if n < 4:
                for e in range(8):
                    a(f"v_xor_b32 v8, {((n&1)<<15) | ((64*(n>>1)+16*(e&3)+8*(e>>2))<<13)}, v5\nglobal_load_dwordx4 {v4(T+4*e)}, v8, s[44:45]{nt}")
            else:
                a(f"v_xor_b32 v8, {(n-4)<<15}, v5")
                for r in range(8): a(f"global_load_dwordx4 {v4(T+4*r)}, v8, s[46:47] offset:{1024*r-4096}{nt}")
        ld(0); ld(1)
        for n in range(8):
            if n + 2 < 8: ld(n + 2)
            if n < 4: s.perm(32 + 32 * (n % 3), 32 * n, True, 22)
            else: s.perm(32 + 32 * (n % 3), 128 + 32 * (n - 4))
        s.masks(24, 8)
        a(f"""v_lshrrev_b32 v8, 3, v0
        v_lshl_add_u32 v9, v8, 3, s53
        s_lshl_b32 s49, s38, 8
        s_add_u32 s55, s55, s49
        v_lshl_add_u32 v10, v8, 14, s55
        v_lshl_add_u32 v10, v7, 4, v10
        v_add_u32 v11, {1<<17}, v10
        v_add_u32 v12, {2<<17}, v10
        v_add_u32 v13, {3<<17}, v10
        s_lshl_b32 s49, s38, 9
        v_lshl_add_u32 v14, v2, 4, s49
        v_and_b32 v8, 1, v3
        v_lshl_add_u32 v14, v8, 3, v14
        s_lshl_b32 s40, s54, 6
        v_and_b32 v8, 1, v2
        v_lshl_add_u32 v15, v8, 7, s49
        v_lshl_add_u32 v15, v3, 4, v15
        v_add_u32 v15, s40, v15
        v_xor_b32 v16, 64, v15
        s_lshl_b32 s49, s38, 8
        s_add_u32 s49, s49, {EX}
        v_lshl_add_u32 v17, v2, 4, s49
        v_and_b32 v8, 3, v2
        v_lshlrev_b32 v18, 8, v8
        v_lshl_add_u32 v18, v3, 4, v18
        v_add_u32 v18, s40, v18
        v_xor_b32 v19, 64, v18
        v_lshl_add_u32 v20, v2, 4, s52""")
        s.stamp(5)
        s.poll("\n".join(f"global_load_dwordx2 {v2(32+2*q)}, v9, s[34:35] offset:{64*q} sc1" for q in range(4)), range(32, 40), 8)
        s.stamp(6)
        ptl = lambda hf: "\n".join(f"global_load_dwordx4 {v4(64+16*hf+4*q)}, v{10+q}, s[34:35] offset:{128*hf} sc1" for q in range(4))
        a(ptl(0))
        a("v_max_f32 v40, v32, v34\nv_max3_f32 v40, v40, v36, v38")
        s.ror("v_max_f32", [40], [8]); s.xrow("v_max_f32", [40], [41])
        for q in range(4): a(f"v_sub_f32 v{32+2*q}, v{32+2*q}, v40")
        for q in range(4): a(f"v_exp_f32 v{32+2*q}, v{32+2*q}")
        for q in range(4): a(f"v_cvt_pk_bf16_f32 v{32+2*q}, v{32+2*q}, v{32+2*q}")
        for q in range(4):
            for m in range(4): a(f"v_and_b32 v{48+4*q+m}, v{24+m}, v{32+2*q}")
        for q in range(4): a(f"v_and_b32 v{32+2*q}, 0xffff0000, v{32+2*q}")
        a("v_mul_f32 v40, v32, v33\nv_fmac_f32 v40, v34, v35\nv_fmac_f32 v40, v36, v37\nv_fmac_f32 v40, v38, v39")
        s.ror("v_add_f32", [40], [8]); s.xrow("v_add_f32", [40], [41])
        a("v_rcp_f32 v40, v40")
        for hf in range(2):
            s.poll(ptl(hf), range(64 + 16 * hf, 80 + 16 * hf), 8, issued=True)
            s.stamp(7 + hf)
            if hf == 0: a(ptl(1))
            for q in range(4): a(f"{MF} v[44:47], {v4(48+4*q)}, {v4(64+16*hf+4*q)}, {'v[44:47]' if q else 0}")
            a(f"""v_pk_mul_f32 v[44:45], v[44:45], v[40:41] op_sel_hi:[1,0]
            v_pk_mul_f32 v[46:47], v[46:47], v[40:41] op_sel_hi:[1,0]
            v_cvt_pk_bf16_f32 v42, v44, v45
            v_cvt_pk_bf16_f32 v43, v46, v47
            s_mov_b32 exec_lo, 0x00ff00ff
            s_mov_b32 exec_hi, 0xff00ff00
            ds_write_b64 v14, v[42:43] offset:{256*hf}
            s_mov_b64 exec, -1
            ds_read_b128 v[32:35], v15 offset:{256*hf}
            ds_read_b128 v[36:39], v16 offset:{256*hf}""")
            for k in range(2):
                n = 2 * hf + k
                for i in range(8): a(f"{MF} {v4(96+4*i)}, {v4(32+4*k)}, {v4(32*n+4*i,'a')}, {v4(96+4*i) if n else 0}")
        for i in range(8): a(f"v_add_f32 v{96+4*i}, v{96+4*i}, v{97+4*i}")
        for q in range(4): a(f"v_cvt_pk_bf16_f32 v{32+q}, v{96+8*q}, v{100+8*q}")
        a(f"""s_mov_b64 exec, 0xffff
        ds_write_b128 v17, v[32:35]
        s_mov_b64 exec, -1
        s_waitcnt lgkmcnt(0)
        s_barrier""")
        for n in range(4): a(f"ds_read_b128 {v4(64+4*n)}, v{18+(n&1)} offset:{EX+128*(n>>1)}")
        for n in range(4):
            for i in range(8): a(f"{MF} {v4(96+4*i)}, {v4(64+4*n)}, {v4(128+32*n+4*i)}, {v4(96+4*i) if n else 0}")
        for i in range(8): a(f"v_pk_add_f32 {v2(96+4*i)}, {v2(96+4*i)}, {v2(98+4*i)}\nv_add_f32 v{96+4*i}, v{96+4*i}, v{97+4*i}")
        for q in range(4): a(f"v_cvt_pk_bf16_f32 v{32+q}, v{96+8*q}, v{100+8*q}")
        a("""s_mov_b64 exec, 0xffff
        global_store_dwordx4 v20, v[32:35], s[34:35] sc1
        s_mov_b64 exec, -1""")
        s.stamp(9)
        a("s_branch FIN")
    def role_A(s):
        a = s.a; nt = s.p.get("ntA", s.nt)
        a(f"""ROLE_A:
        s_sub_u32 s40, s37, 15
        s_and_b32 s50, s40, 1
        s_lshr_b32 s40, s40, 1
        s_lshl_b32 s40, s40, 3
        s_add_u32 s51, s40, s36
        s_lshl_b32 s41, s51, 18
        s_lshl_b32 s42, s38, 12
        s_add_u32 s41, s41, s42
        s_mul_i32 s43, s50, {s.p['stg']<<14}
        v_add_u32 v5, s43, v4
        s_mul_i32 s42, s38, 4224
        s_add_u32 s44, s6, s41
        s_addc_u32 s45, s7, 0""")
        def dma(n):
            a(f"v_xor_b32 v8, {n<<14}, v5")
            for r in range(4): a(f"s_add_u32 m0, s42, {(n&7)*16896+r*32}\nglobal_load_lds_dwordx4 v8, s[44:45] offset:{1024*r}{nt} ; @w:c{n}")
        for n in range(4): dma(n)
        a(f"""v_lshrrev_b32 v9, 2, v0
        v_mul_u32_u24 v9, 1056, v9
        v_and_b32 v10, 3, v0
        v_lshl_add_u32 v9, v10, 3, v9
        s_lshl_b32 s43, s38, 8
        v_add_u32 v9, s43, v9
        v_add_u32 v10, 67584, v9
        v_mul_u32_u24 v13, 1056, v2
        v_lshl_add_u32 v13, v3, 4, v13
        s_mul_i32 s49, s38, 16896
        v_add_u32 v11, s49, v13
        v_add_u32 v12, 67584, v11
        v_add_u32 v13, {QAS}, v13
        s_lshr_b32 s52, s51, 5
        s_and_b32 s53, s51, 31
        s_lshl_b32 s52, s52, 1
        s_add_u32 s52, s52, s50
        s_lshl_b32 s49, s52, 14
        s_lshl_b32 s41, s38, 12
        s_add_u32 s49, s49, s41
        s_add_u32 s49, s49, {QA}
        v_add_u32 v14, s49, v4
        s_add_u32 s49, s42, {QAS}
        v_add_u32 v15, s49, v4""")
        qal = "\n".join(f"global_load_dwordx4 {v4(32+4*k)}, v14, s[34:35] offset:{1024*k} sc1" for k in range(4))
        def qk(t):
            for st in range(16): a(f"ds_read_b128 {v4(16*st+4*t,'a')}, v{11+(t&1)} offset:{64*st}")
        for n in range(16):
            a(f"WAIT c{n}\ns_waitcnt lgkmcnt(0)\ns_barrier")
            if n in (0, 7, 15): s.stamp({0: 1, 7: 2, 15: 3}[n])
            if n + 4 < 16: dma(n + 4)
            if n == 8: s.flagload(1, 27)
            if n < 8:
                for T in range(8): a(f"ds_read_b64_tr_b16 {v2(128+32*(n&3)+4*T+2*(n>>2))}, v{9+(n>>2)} offset:{(n&3)*16896+32*T}")
            if n in (3, 7, 11): qk(n >> 2)
            if n >= 12:
                L = a.newlabel("AQ")
                a(f"s_cmp_lg_u32 s38, {n&3}\ns_cbranch_scc1 {L}"); qk(3); a(f"{L}:")
            if n == 9:
                a(f"""v_lshlrev_b32 v8, 4, v2
                v_add_u32 v48, {MX}, v8
                s_lshl_b32 s49, s38, 2
                v_add_u32 v49, s49, v48
                s_lshl_b32 s49, s38, 10
                s_add_u32 s49, s49, {PX}
                v_add_u32 v50, s49, v4
                v_add_u32 v51, {PX}, v4
                s_lshl_b32 s49, s52, 12
                s_lshl_b32 s41, s53, 3
                s_add_u32 s49, s49, s41
                s_add_u32 s49, s49, {ST}
                v_lshl_add_u32 v52, v2, 8, s49
                s_lshl_b32 s49, s52, 19
                s_lshl_b32 s41, s53, 14
                s_add_u32 s49, s49, s41
                s_add_u32 s49, s49, s43
                s_add_u32 s49, s49, {PT}
                v_lshl_add_u32 v53, v3, 12, s49
                v_lshl_add_u32 v53, v6, 10, v53
                v_lshl_add_u32 v53, v7, 4, v53""")
            if n == 13: s.flagwait(1, 27, FALL); a(qal)
        s.poll(qal, range(32, 48), 8, issued=True)
        s.stamp(4)
        for k in range(4): a(f"ds_write_b128 v15, {v4(32+4*k)} offset:{1056*k}")
        a("s_waitcnt lgkmcnt(0)\ns_barrier")
        for st in range(16): a(f"ds_read_b128 {v4(64+4*st)}, v13 offset:{64*st}")
        for st in range(16):
            if st == 5: a("s_waitcnt lgkmcnt(0)")
            for t in range(4):
                a(f"{MF} {v4(16+4*t)}, {v4(16*st+4*t,'a')}, {v4(64+4*st)}, {v4(16+4*t) if st else 0}")
                if 5 <= st < 13:
                    k = st - 5; u = k >> 1; T = 4 * (k & 1) + t
                    for h in range(2): a(f"ds_read_b64_tr_b16 {v2(32*u+4*T+2*h,'a')}, v{9+h} offset:{u*16896+32*T}")
        s.stamp(5)
        a("v_max3_f32 v32, v16, v17, v18")
        for k in range(6): a(f"v_max3_f32 v32, v32, v{19+2*k}, v{20+2*k}")
        a("v_max_f32 v32, v32, v31")
        s.xrow("v_max_f32", [32], [33])
        a("""ds_write_b32 v49, v32
        s_waitcnt lgkmcnt(0)
        s_barrier
        ds_read_b128 v[32:35], v48
        v_max3_f32 v32, v32, v33, v34
        v_max_f32 v54, v32, v35""")
        for k in range(8): a(f"v_pk_add_f32 {v2(16+2*k)}, {v2(16+2*k)}, v[54:55] op_sel_hi:[1,0] neg_lo:[0,1] neg_hi:[0,1]")
        for k in range(8):
            a(f"v_exp_f32 v{16+2*k}, v{16+2*k}\nv_exp_f32 v{17+2*k}, v{17+2*k}")
            if k: a(f"v_cvt_pk_bf16_f32 v{35+k}, v{14+2*k}, v{15+2*k}")
            if k == 4: a("ds_write_b128 v50, v[36:39]")
        a("v_cvt_pk_bf16_f32 v43, v30, v31\nds_write_b128 v50, v[40:43] offset:4096")
        for k in range(4): a(f"v_pk_add_f32 {v2(16+2*k)}, {v2(16+2*k)}, {v2(24+2*k)}")
        a("v_pk_add_f32 v[16:17], v[16:17], v[20:21]\nv_pk_add_f32 v[18:19], v[18:19], v[22:23]\nv_pk_add_f32 v[16:17], v[16:17], v[18:19]\nv_add_f32 v16, v16, v17")
        s.xrow("v_add_f32", [16], [17])
        a(f"ds_write_b32 v49, v16 offset:{LX-MX}\ns_waitcnt lgkmcnt(0)\ns_barrier")
        s.stamp(6)
        for k in range(8): a(f"ds_read_b128 {v4(64+4*k)}, v51 offset:{1024*k}")
        L = a.newlabel("AS")
        a(f"""s_cmp_lg_u32 s38, 3
        s_cbranch_scc1 {L}
        ds_read_b128 v[32:35], v48 offset:{LX-MX}
        v_add_f32 v32, v32, v33
        v_add_f32 v34, v34, v35
        v_add_f32 v55, v32, v34
        s_mov_b64 exec, 0xffff
        global_store_dwordx2 v52, v[54:55], s[34:35] sc1
        s_mov_b64 exec, -1
        {L}:""")
        def epi(hf):
            o = []; D = 96 + 16 * hf
            for r0 in (0, 2):
                O = 16 + 4 * r0 + 16 * hf; t = 56 + r0
                for p in range(2):
                    o.append(f"v_cvt_pk_bf16_f32 v{O+p}, v{D+8*p+r0}, v{D+8*p+4+r0}")
                    o.append(f"v_cvt_pk_bf16_f32 v{O+2+p}, v{D+8*p+r0+1}, v{D+8*p+4+r0+1}")
                    o.append(f"v_cvt_pk_bf16_f32 v{t+p}, v{D+8*p+r0}, v{D+8*p+4+r0}")
                for p in range(2): o.append(f"v_mov_b32_dpp v{O+p}, v{O+2+p} row_ror:8 row_mask:0xf bank_mask:0xc")
                for p in range(2): o.append(f"v_mov_b32_dpp v{O+2+p}, v{t+p} row_ror:8 row_mask:0xf bank_mask:0x3")
                o.append(f"global_store_dwordx4 v53, {v4(O)}, s[34:35] offset:{1024*r0+128*hf} sc1")
            return o
        for hf in range(2):
            e = epi(0) if hf else []; m = 0
            for k in range(8):
                for t4 in range(4):
                    T = 4 * hf + t4
                    B = v4(128 + 32 * k + 4 * T) if k < 4 else v4(32 * (k - 4) + 4 * T, 'a')
                    a(f"{MF} {v4(96+4*T)}, {v4(64+4*k)}, {B}, {v4(96+4*T) if k else 0}")
                    m += 1
                    if m >= 3:
                        for x in e[:3]: a(x)
                        e = e[3:]
            if hf == 0: s.stamp(7)
        for x in epi(1): a(x)
        s.stamp(8)
    def fin(s):
        a = s.a
        a("FIN:")
        if s.p["dbg"]:
            a("s_waitcnt vmcnt(0)"); s.stamp(14)
            a("s_waitcnt lgkmcnt(0)\nv_mov_b32 v8, 0")
            for k in range(15): a(f"v_writelane_b32 v8, s{70+2*k}, {k}")
            a(f"""s_lshl_b32 s41, s2, 2
            s_add_u32 s41, s41, s38
            s_lshl_b32 s41, s41, 8
            s_add_u32 s41, s41, {STAMP}
            v_add_u32 v9, s41, v1
            global_store_dword v9, v8, s[34:35]""")
        a("END:\ns_endpgm\nCODE_END:")
    def build(s):
        if s.p["dbg"]:
            for k in range(1, 15): s.a(f"s_mov_b32 s{70+2*k}, 0")
        s.prologue(); s.role_P(); s.role_QI(); s.role_I(); s.g_main(); s.role_E(); s.role_A(); s.fin()
        return wrap(s.a.text(), 248, 256, LDS, 256, 256)
if __name__ == "__main__":
    kw = eval("dict(" + (sys.argv[2] if len(sys.argv) > 2 else "") + ")")
    open(sys.argv[1], "w").write(G(**kw).build())
```

```python
import sys
from asm2 import *
H1, Q1, ST, QA, MD, OP, AO, PT, STAMP = 0, 0x10000, 0x30000, 0x40000, 0x50000, 0x60000, 0x80000, 0x100000, 0x400000
SCR = 131072
MODF, HL, X1F, XH, HH, RED = SCR, SCR + 8192, SCR + 16896, SCR + 18944, SCR + 21120, SCR + 21504
QAS, PX, MX, LX = 135168, 152064, 160256, 160512
LDS = 160768
MF = "v_mfma_f32_16x16x32_bf16"
FALL, FP = 0x3FFFF0FF, 0xFF
DEF = dict(dbg=0, nt=1, stg=1, pre=0, tmo=1 << 16, codekb=28, fl=0)
def v4(n, p="v"): return f"{p}[{n}:{n+3}]"
def v2(n, p="v"): return f"{p}[{n}:{n+1}]"
class G:
    def __init__(s, **kw):
        s.p = dict(DEF); s.p.update(kw); s.a = Asm(); s.nt = " nt" if s.p["nt"] else ""
    def stamp(s, k):
        if s.p["dbg"]: s.a(f"s_memrealtime s[{70+2*k}:{71+2*k}]")
    def chk(s, regs, t):
        a = s.a; r = list(regs)
        if len(r) % 2 == 0: a(f"v_max_u32 v{t}, v{r[0]}, v{r[1]}"); r = r[2:]
        else: a(f"v_max3_u32 v{t}, v{r[0]}, v{r[1]}, v{r[2]}"); r = r[3:]
        for k in range(0, len(r), 2): a(f"v_max3_u32 v{t}, v{t}, v{r[k]}, v{r[k+1]}")
        a(f"v_cmp_eq_u32 vcc, -1, v{t}")
    def poll(s, loads, regs, t, issued=False):
        a = s.a; L, C, D = a.newlabel("PL"), a.newlabel("PC"), a.newlabel("PD")
        a(f"s_mov_b32 s69, {s.p['tmo']}")
        if issued: a(f"s_branch {C}")
        a(f"{L}:"); a(loads); a(f"{C}:")
        s.chk(regs, t)
        a(f"s_cbranch_vccz {D}\ns_sub_u32 s69, s69, 1\ns_cbranch_scc0 {L}\n{D}:")
    def flagload(s, va, vd):
        if s.p["fl"] & 1: return
        s.a(f"global_load_dword v{vd}, v{va}, s[32:33] sc1")
    def flagwait(s, va, vd, mask, issued=True):
        if s.p["fl"] & 1: return
        a = s.a; L, D = a.newlabel("FL"), a.newlabel("FD")
        ck = f"v_cmp_ne_u32 vcc, 0x01010101, v{vd}\ns_and_b32 s68, vcc_lo, {mask}\ns_cbranch_scc0 {D}"
        if issued: a(ck)
        a(f"s_mov_b32 s69, {s.p['tmo']}\n{L}:"); s.flagload(va, vd); a(ck)
        a(f"s_sub_u32 s69, s69, 1\ns_cbranch_scc0 {L}\n{D}:")
    def setflag(s, t0, t1):
        if s.p["fl"] & 2: return
        ex = "s_mov_b64 exec, 1" if not s.p["fl"] & 4 else "s_cmp_eq_u32 s38, 0\ns_cselect_b64 exec, 1, 0"
        s.a(f"""v_mov_b32 v{t0}, s2
        v_mov_b32 v{t1}, 1
        {ex}
        global_store_byte v{t0}, v{t1}, s[32:33] sc1
        s_mov_b64 exec, -1""")
    def masks(s, m, t, val=0xFFFF):
        a = s.a
        a(f"""v_and_b32 v{t}, 1, v2
        v_lshlrev_b32 v{t}, 4, v{t}
        v_mov_b32 v{m+3}, {val}
        v_lshlrev_b32 v{m+3}, v{t}, v{m+3}
        v_bfe_u32 v{t}, v2, 1, 2""")
        for q in range(4):
            a(f"v_cmp_eq_u32 vcc, {q}, v{t}\nv_cndmask_b32 v{m+q}, 0, v{m+3}, vcc")
    def ror(s, op, regs, amts):
        for n in amts:
            for r in regs: s.a(f"{op}_dpp v{r}, v{r}, v{r} row_ror:{n} row_mask:0xf bank_mask:0xf")
    def xrow(s, op, regs, tmps, which=(16, 32)):
        for w in which:
            for r, t in zip(regs, tmps): s.a(f"v_mov_b32 v{t}, v{r}")
            for r, t in zip(regs, tmps): s.a(f"v_permlane{w}_swap_b32 v{r}, v{t}")
            for r, t in zip(regs, tmps): s.a(f"{op} v{r}, v{r}, v{t}")
    def perm(s, src, dst, agpr=False, tmp=None):
        out = []
        for p in range(4):
            for i in range(8):
                d = dst + 4 * i + p; sel = "s67" if i & 1 else "s66"
                x, y = src + 4 * (2 * p + 1) + (i >> 1), src + 4 * (2 * p) + (i >> 1)
                if agpr: out.append(f"v_perm_b32 v{tmp+(i&1)}, v{x}, v{y}, {sel}\nv_accvgpr_write_b32 a{d}, v{tmp+(i&1)}")
                else: out.append(f"v_perm_b32 v{d}, v{x}, v{y}, {sel}")
        s.a("\n".join(out))
    def rstd(s, S, Q, t):
        s.a(f"""v_mul_f32 v{S}, 0x3b000000, v{S}
        v_mul_f32 v{t}, v{S}, v{S}
        v_fma_f32 v{Q}, v{Q}, s65, -v{t}
        v_max_f32 v{Q}, 0, v{Q}
        v_add_f32 v{Q}, 0x3727c5ac, v{Q}
        v_rsq_f32 v{Q}, v{Q}""")
    def prologue(s):
        a = s.a
        a("s_load_dwordx16 s[4:19], s[0:1], 0\ns_load_dwordx16 s[20:35], s[0:1], 64")
        s.stamp(0)
        a(f"""s_cmp_ge_u32 s2, 248
        s_cbranch_scc1 END
        v_lshrrev_b32 v1, 6, v0
        v_and_b32 v0, 63, v0
        s_and_b32 s36, s2, 7
        s_lshr_b32 s37, s2, 3
        v_readfirstlane_b32 s38, v1
        v_and_b32 v2, 15, v0
        v_lshrrev_b32 v3, 4, v0
        v_lshlrev_b32 v4, 4, v0
        v_lshlrev_b32 v1, 2, v0
        v_lshrrev_b32 v6, 3, v2
        v_and_b32 v7, 7, v2
        v_mov_b32 v28, -1
        s_mov_b32 s66, 0x05040100
        s_mov_b32 s67, 0x07060302
        s_mov_b32 s65, 0x3b000000
        s_cmp_ge_u32 s37, 15
        s_cbranch_scc1 ROLE_A
        s_cmp_ge_u32 s37, 7
        s_cbranch_scc1 ROLE_E
        s_cmp_ge_u32 s37, 4
        s_cbranch_scc1 ROLE_QI""")
    def uk_setup(s):
        s.a(f"""s_add_u32 s46, s10, s43
        s_addc_u32 s47, s11, 0
        v_lshlrev_b32 v26, 13, v3
        v_lshl_add_u32 v26, v2, 4, v26
        s_lshl_b32 s48, s38, 15""")
    def uk_dma(s, n):
        s.a(f"""v_xor_b32 v27, {((n & 15) << 4) | (n << 15)}, v26
        s_add_u32 m0, s48, {n*1024}
        global_load_lds_dwordx4 v27, s[46:47]{s.nt} ; @w:uk{n}""")
    def role_P(s):
        a = s.a; nt = s.nt
        a(f"""s_lshl_b32 s40, s37, 2
        s_add_u32 s40, s40, s38
        s_mul_i32 s41, s40, 196608
        s_lshl_b32 s42, s36, 7
        s_add_u32 s41, s41, s42
        s_add_u32 s41, s41, 3072
        v_mul_u32_u24 v5, 49152, v3
        v_lshl_add_u32 v5, v6, 10, v5
        v_lshl_add_u32 v5, v7, 4, v5
        s_lshl_b32 s43, s40, 6
        v_lshl_add_u32 v8, v6, 10, s43
        v_lshl_add_u32 v8, v3, 4, v8
        v_lshlrev_b32 v9, 5, v0
        v_lshrrev_b32 v10, 1, v3
        v_lshl_add_u32 v10, v10, 10, s42
        v_lshl_add_u32 v10, v7, 4, v10
        v_and_b32 v11, 1, v3
        v_lshl_add_u32 v10, v11, 3, v10
        s_lshl_b32 s43, s36, 10
        s_lshl_b32 s49, s37, 4
        s_add_u32 s43, s43, s49
        v_lshl_add_u32 v29, v7, 7, s43
        v_lshl_add_u32 v30, v6, 6, v29
        v_lshl_add_u32 v30, v3, 2, v30
        s_add_u32 s44, s28, s41
        s_addc_u32 s45, s29, 0
        global_load_dwordx4 v[12:15], v8, s[26:27]
        global_store_dword v30, v28, s[34:35] sc1 ; @w:clr""")
        for t in range(8):
            a(f"global_load_dwordx4 {v4(32+4*t)}, v5, s[44:45] offset:{3072 if t&1 else -3072}{nt}")
            if t == 1: a("global_load_dwordx4 v[16:19], v9, s[4:5]\nglobal_load_dwordx4 v[20:23], v9, s[4:5] offset:16\nglobal_load_dwordx2 v[24:25], v10, s[4:5]")
            if t & 1 and t < 7: a("v_add_u32 v5, 12288, v5")
        a(f"""s_and_b32 s50, s2, 15
        s_lshr_b32 s51, s2, 4
        s_lshl_b32 s43, s51, 2
        s_add_u32 s43, s43, s38
        s_lshl_b32 s52, s43, 7
        s_lshl_b32 s43, s43, 19
        s_lshl_b32 s49, s50, 8
        s_add_u32 s43, s43, s49""")
        s.uk_setup()
        for n in range(s.p["pre"]): s.uk_dma(n)
        s.masks(96, 8)
        a("WAIT clr\ns_barrier"); s.setflag(8, 9)
        s.stamp(1)
        for t in range(8):
            src = 12 + (t >> 1)
            a(f"v_and_b32 v{100+t}, 0xffff0000, v{src}" if t & 1 else f"v_lshlrev_b32 v{100+t}, 16, v{src}")
        for t in range(8): a(f"v_mul_f32 v{108+t}, 0xbfb8aa3b, v{100+t}")
        for t in range(8): a(f"v_exp_f32 v{108+t}, v{108+t}")
        for t in range(8): a(f"v_add_f32 v{108+t}, 1.0, v{108+t}")
        for t in range(8): a(f"v_rcp_f32 v{108+t}, v{108+t}")
        for t in range(8): a(f"v_mul_f32 v{100+t}, v{100+t}, v{108+t}")
        for t in range(8): a(f"v_cvt_pk_bf16_f32 v{100+t}, v{100+t}, v{100+t}")
        for t in range(8):
            for q in range(4): a(f"v_and_b32 v{64+4*t+q}, v{96+q}, v{100+t}")
        a("v_mov_b32 v8, 0\nv_mov_b32 v9, 0\nv_mov_b32 v10, 0x3f803f80")
        for k in range(8): a(f"v_dot2c_f32_bf16 v8, v{16+k}, v10\nv_dot2c_f32_bf16 v9, v{16+k}, v{16+k}")
        s.ror("v_add_f32", [8, 9], [8, 4, 2, 1]); s.xrow("v_add_f32", [8, 9], [10, 11], (16,))
        s.rstd(8, 9, 10)
        a(f"""v_lshlrev_b32 v16, 16, v24
        v_and_b32 v17, 0xffff0000, v24
        v_lshlrev_b32 v18, 16, v25
        v_and_b32 v19, 0xffff0000, v25
        v_cmp_le_u32 vcc, 8, v2
        s_cmp_eq_u32 s40, 0
        s_cselect_b32 s49, 1.0, 0
        v_mov_b32 v20, s49""")
        for r in range(4): a(f"v_sub_f32 v{16+r}, v{16+r}, v8\nv_mul_f32 v{16+r}, v{16+r}, v9\nv_cndmask_b32 v{16+r}, 1.0, v{16+r}, vcc\nv_cndmask_b32 v{12+r}, 0, v20, vcc")
        a(f"""s_lshl_b32 s49, s38, 10
        s_add_u32 s49, s49, {RED}
        v_add_u32 v21, s49, v4
        v_add_u32 v22, {RED}, v4
        v_lshrrev_b32 v23, 1, v3
        v_lshl_add_u32 v29, v23, 6, v29
        v_and_b32 v23, 1, v3
        v_lshl_add_u32 v29, v23, 3, v29""")
        for t in range(8): a(f"{MF} v[12:15], {v4(64+4*t)}, {v4(32+4*t)}, v[12:15]")
        a("v_pk_mul_f32 v[12:13], v[12:13], v[16:17]\nv_pk_mul_f32 v[14:15], v[14:15], v[18:19]")
        L = a.newlabel("P1")
        a(f"""ds_write_b128 v21, v[12:15]
        s_waitcnt lgkmcnt(0)
        s_barrier
        s_cmp_lg_u32 s38, 0
        s_cbranch_scc1 {L}""")
        for w in range(1, 4): a(f"ds_read_b128 {v4(32+4*w)}, v22 offset:{1024*w}")
        a("""v_pk_add_f32 v[12:13], v[12:13], v[36:37]
        v_pk_add_f32 v[14:15], v[14:15], v[38:39]
        v_pk_add_f32 v[40:41], v[40:41], v[44:45]
        v_pk_add_f32 v[42:43], v[42:43], v[46:47]
        v_pk_add_f32 v[12:13], v[12:13], v[40:41]
        v_pk_add_f32 v[14:15], v[14:15], v[42:43]""")
        s.ror("v_add_f32", [12, 13, 14, 15], [8])
        a(f"""v_cvt_pk_bf16_f32 v12, v12, v13
        v_cvt_pk_bf16_f32 v13, v14, v15
        s_mov_b32 exec_lo, 0x00ff00ff
        s_mov_b32 exec_hi, 0x00ff00ff
        global_store_dwordx2 v29, v[12:13], s[34:35] sc1
        s_mov_b64 exec, -1
        {L}:""")
        s.stamp(2)
        for n in range(s.p["pre"], 16): s.uk_dma(n)
        s.p2b(1)
        a(f"""s_mul_i32 s41, s40, 196608
        s_lshl_b32 s42, s36, 9
        s_add_u32 s41, s41, s42
        s_add_u32 s41, s41, {2048+3072}
        s_add_u32 s44, s28, s41
        s_addc_u32 s45, s29, 0
        v_mul_u32_u24 v5, 49152, v3
        v_lshl_add_u32 v5, v2, 4, v5""")
        for t in range(8):
            for u in range(2): a(f"global_load_dwordx4 {v4(128+32*u+4*t)}, v5, s[44:45] offset:{(3072 if t&1 else -3072)+256*u}{nt}")
            if t & 1 and t < 7: a("v_add_u32 v5, 12288, v5")
        s.g_w1dma()
        for t in range(8):
            for u in range(2): a(f"{MF} {v4(12+4*u)}, {v4(64+4*t)}, {v4(128+32*u+4*t)}, {v4(12+4*u) if t else 0}")
        L = a.newlabel("R")
        a(f"""ds_write_b128 v21, v[12:15]
        ds_write_b128 v21, v[16:19] offset:4096
        v_bfe_u32 v22, v0, 1, 4
        v_and_b32 v23, 1, v0
        v_lshl_add_u32 v22, v23, 4, v22
        v_and_b32 v23, 32, v0
        v_add_u32 v22, v22, v23
        s_lshl_b32 s49, s38, 12
        s_add_u32 s49, s49, {RED}
        v_lshl_add_u32 v22, v22, 4, s49
        s_lshl_b32 s41, s37, 14
        s_lshl_b32 s42, s36, 10
        s_add_u32 s41, s41, s42
        s_lshl_b32 s42, s38, 9
        s_add_u32 s41, s41, s42
        s_add_u32 s41, s41, {MD}
        v_lshl_add_u32 v24, v23, 8, s41
        v_and_b32 v23, 31, v0
        v_lshl_add_u32 v24, v23, 4, v24
        s_waitcnt lgkmcnt(0)
        s_barrier
        s_cmp_ge_u32 s38, 2
        s_cbranch_scc1 {L}""")
        for w in range(4): a(f"ds_read_b128 {v4(32+4*w)}, v22 offset:{1024*w}")
        a(f"""v_pk_add_f32 v[32:33], v[32:33], v[36:37]
        v_pk_add_f32 v[34:35], v[34:35], v[38:39]
        v_pk_add_f32 v[40:41], v[40:41], v[44:45]
        v_pk_add_f32 v[42:43], v[42:43], v[46:47]
        v_pk_add_f32 v[32:33], v[32:33], v[40:41]
        v_pk_add_f32 v[34:35], v[34:35], v[42:43]
        global_store_dwordx4 v24, v[32:35], s[34:35] sc1
        {L}:
        s_branch G_MAIN""")
    def p2b(s, nb):
        a = s.a
        s.flagload(1, 31)
        a(f"""v_lshl_add_u32 v8, v7, 1, v6
        v_lshl_add_u32 v9, v8, 10, s48
        v_xor_b32 v8, v3, v8""")
        for st in range(4): a(f"v_xor_b32 v10, {4*st}, v8\nv_lshl_add_u32 v{12+st}, v10, 4, v9")
        a(f"""s_lshl_b32 s49, s50, 12
        s_add_u32 s49, s49, {Q1}
        v_add_u32 v10, s49, v4
        s_lshl_b32 s49, s50, 10
        s_add_u32 s49, s49, s52
        s_add_u32 s49, s49, {QA}
        v_lshrrev_b32 v11, 1, v3
        v_lshl_add_u32 v11, v11, 15, s49
        v_lshl_add_u32 v11, v7, 4, v11
        s_mov_b32 s64, 0x3e0293ee""")
        for blk in range(nb):
            a(f"WAIT uk{16*blk+15}")
            for t in range(4):
                for st in range(4): a(f"ds_read_b128 {v4(128+64*blk+16*t+4*st)}, v{12+st} offset:{16384*blk+256*t}")
        s.flagwait(1, 31, FALL)
        s.stamp(3)
        s.poll("\n".join(f"global_load_dwordx4 {v4(32+4*st)}, v10, s[34:35] offset:{1024*st} sc1" for st in range(4)), range(32, 48), 8)
        s.stamp(4)
        for blk in range(nb):
            D = 48 if blk == 0 else 100
            for st in range(4):
                for t in range(4): a(f"{MF} {v4(D+4*t)}, {v4(32+4*st)}, {v4(128+64*blk+16*t+4*st)}, {v4(D+4*t) if st else 0}")
        for blk in range(nb):
            D = 48 if blk == 0 else 100
            for t in range(4): a(f"v_pk_add_f32 {v2(D+4*t)}, {v2(D+4*t)}, {v2(D+4*t+2)}")
            for t in range(4): a(f"v_add_f32 v{D+4*t}, v{D+4*t}, v{D+4*t+1}")
            s.xrow("v_add_f32", [D + 4 * t for t in range(4)], [D + 4 * t + 1 for t in range(4)], (16,))
            for t in range(4): a(f"v_mul_f32 v{D+4*t}, s64, v{D+4*t}")
            a(f"""v_cvt_pk_bf16_f32 v{D}, v{D}, v{D+4}
            v_cvt_pk_bf16_f32 v{D+1}, v{D+8}, v{D+12}
            v_mov_b32_dpp v{D+2}, v{D} row_ror:8 row_mask:0xf bank_mask:0xf
            v_mov_b32_dpp v{D+3}, v{D+1} row_ror:8 row_mask:0xf bank_mask:0xf
            s_mov_b32 exec_lo, 0xff
            s_mov_b32 exec_hi, 0xff
            global_store_dwordx4 v11, {v4(D)}, s[34:35] offset:{128*blk} sc1
            s_mov_b64 exec, -1""")
        s.stamp(5)
    def role_QI(s):
        a = s.a
        a(f"""ROLE_QI:
        s_cmp_eq_u32 s37, 6
        s_cbranch_scc1 ROLE_I
        s_sub_u32 s50, s2, 16
        s_lshl_b32 s52, s38, 8
        s_lshl_b32 s43, s38, 20
        s_lshl_b32 s49, s50, 8
        s_add_u32 s43, s43, s49""")
        s.uk_setup()
        for n in range(32): s.uk_dma(n)
        s.p2b(2)
        s.g_w1dma()
        a("s_branch G_MAIN")
    def role_I(s):
        a = s.a
        a(f"""ROLE_I:
        s_getpc_b64 s[40:41]
        PC0:
        s_sub_u32 s40, s40, PC0-{KNAME}
        s_subb_u32 s41, s41, 0
        s_lshl_b32 s42, s38, 10
        v_add_u32 v5, s42, v4""")
        for k in range(s.p["codekb"] // 4):
            a(f"v_min_u32 v8, CODE_END-{KNAME}-16, v5\nglobal_load_dwordx4 {v4(32+4*k)}, v8, s[40:41]\nv_add_u32 v5, 4096, v5")
        a(f"""s_lshl_b32 s42, s36, 15
        s_lshl_b32 s43, s38, 13
        s_add_u32 s42, s42, s43
        s_add_u32 s42, s42, {QA+4096}
        v_add_u32 v5, s42, v4
        v_mov_b32 v29, -1
        v_mov_b32 v30, -1
        v_mov_b32 v31, -1""")
        for k in range(8): a(f"global_store_dwordx4 v5, v[28:31], s[34:35] offset:{1024*k-4096} sc1 ; @w:clrI")
        a("WAIT clrI\ns_barrier"); s.setflag(8, 9)
        s.stamp(1)
        s.g_w1dma()
        s.flagwait(1, 31, FALL, issued=False)
    def g_w1dma(s):
        a = s.a
        a(f"""s_mul_i32 s53, s36, 7
        s_add_u32 s53, s53, s37
        s_and_b32 s54, s53, 1
        s_lshr_b32 s55, s53, 1
        s_mul_i32 s41, s38, {128*3584}
        s_lshl_b32 s42, s55, 7
        s_add_u32 s41, s41, s42
        s_add_u32 s46, s18, s41
        s_addc_u32 s47, s19, 0
        v_lshrrev_b32 v26, 3, v0
        v_mul_u32_u24 v26, 3584, v26
        v_lshl_add_u32 v26, v7, 4, v26
        s_lshl_b32 s48, s38, 15""")
        for n in range(16):
            a(f"s_add_u32 m0, s48, {n*1024}\nglobal_load_lds_dwordx4 v26, s[46:47]{s.nt} ; @w:w1\nv_add_u32 v26, {8*3584}, v26")
    def g_main(s):
        a = s.a; nt = s.nt
        a(f"""G_MAIN:
        s_lshl_b32 s41, s55, 16
        s_lshl_b32 s42, s38, 8
        s_add_u32 s41, s41, s42
        s_add_u32 s41, s41, 4096
        s_add_u32 s44, s22, s41
        s_addc_u32 s45, s23, 0
        v_lshlrev_b32 v5, 13, v3
        v_lshl_add_u32 v5, v2, 4, v5""")
        for st in range(2):
            for r in range(8): a(f"global_load_dwordx4 {v4(64+32*st+4*r)}, v5, s[44:45] offset:{1024*r-4096}{nt}")
            if st == 0: a("v_add_u32 v5, 32768, v5")
        a(f"""v_and_b32 v8, 1, v3
        v_lshlrev_b32 v9, 4, v2
        v_lshl_add_u32 v9, v8, 3, v9
        v_add_u32 v9, s42, v9
        s_lshl_b32 s43, s54, 10
        v_add_u32 v10, s43, v9
        global_load_dwordx2 v[24:25], v10, s[4:5]
        s_lshl_b32 s41, s55, 7
        s_lshl_b32 s49, s38, 5
        s_add_u32 s41, s41, s49
        v_lshl_add_u32 v10, v2, 1, s41
        global_load_ushort v22, v10, s[20:21]
        s_and_b32 s56, s55, 15
        s_lshr_b32 s41, s56, 2
        s_lshl_b32 s41, s41, 8
        s_and_b32 s49, s56, 1
        s_lshl_b32 s49, s49, 7
        s_add_u32 s41, s41, s49
        s_and_b32 s49, s56, 2
        s_lshl_b32 s49, s49, 2
        s_add_u32 s41, s41, s49
        v_lshl_add_u32 v23, v7, 4, s41
        global_load_dwordx2 v[20:21], v23, s[24:25]
        v_lshrrev_b32 v10, 2, v2
        v_lshl_add_u32 v10, v3, 3, v10
        v_lshlrev_b32 v10, 7, v10
        v_and_b32 v11, 3, v2
        v_lshl_add_u32 v10, v11, 3, v10
        s_lshl_b32 s49, s38, 5
        v_add_u32 v10, s49, v10
        v_add_u32 v11, 65536, v10
        WAIT w1
        s_barrier""")
        for st in range(16):
            for h in range(2): a(f"ds_read_b64_tr_b16 {v2(128+4*st+2*h)}, v{10+(st>>3)} offset:{((st>>2)&1)*32768+(st&3)*4096+h*512}")
        s.perm(64, 192); s.perm(96, 224)
        s.stamp(6)
        a(f"""s_lshl_b32 s41, s54, 13
        s_lshl_b32 s49, s38, 11
        s_add_u32 s41, s41, s49
        s_add_u32 s41, s41, {MD}
        v_add_u32 v12, s41, v4
        v_add_u32 v13, 16384, v12
        v_add_u32 v14, 32768, v12
        v_add_u32 v15, 49152, v12""")
        s.poll("\n".join(f"global_load_dwordx4 {v4(64+8*k+4*u)}, v{12+k}, s[34:35] offset:{1024*u} sc1" for k in range(4) for u in range(2)), range(64, 96), 8)
        for q in range(4): a(f"v_pk_add_f32 {v2(64+2*q)}, {v2(64+2*q)}, {v2(72+2*q)}\nv_pk_add_f32 {v2(80+2*q)}, {v2(80+2*q)}, {v2(88+2*q)}\nv_pk_add_f32 {v2(64+2*q)}, {v2(64+2*q)}, {v2(80+2*q)}")
        a("s_cmp_eq_u32 s38, 2\ns_cselect_b32 s41, 1.0, 0")
        for q in range(8): a(f"v_add_f32 v{64+q}, s41, v{64+q}")
        a(f"""s_add_u32 s49, s49, {MODF}
        v_add_u32 v12, s49, v4
        ds_write_b128 v12, v[64:67]
        ds_write_b128 v12, v[68:71] offset:1024
        s_mul_i32 s49, s38, 2176
        s_add_u32 s49, s49, {HL}
        v_lshl_add_u32 v12, v0, 3, s49""")
        for q in range(4): a(f"v_cvt_pk_bf16_f32 v{72+q}, v{64+2*q}, v{65+2*q}")
        for q in range(4): a(f"v_lshlrev_b32 v80, 16, v{72+q}\nv_and_b32 v81, 0xffff0000, v{72+q}\nv_sub_f32 v80, v{64+2*q}, v80\nv_sub_f32 v81, v{65+2*q}, v81\nv_cvt_pk_bf16_f32 v{76+q}, v80, v81")
        a(f"""ds_write_b64 v12, v[72:73]
        ds_write_b64 v12, v[74:75] offset:512
        ds_write_b64 v12, v[76:77] offset:1088
        ds_write_b64 v12, v[78:79] offset:1600
        v_and_b32 v12, 3, v2
        v_mul_u32_u24 v12, 1088, v12
        v_lshl_add_u32 v12, v3, 4, v12
        v_add_u32 v12, {HL+2176}, v12
        v_lshlrev_b32 v13, 1, v9
        v_add_u32 v13, {MODF}, v13
        v_lshlrev_b32 v14, 5, v0
        v_add_u32 v14, {MODF}, v14
        v_lshlrev_b32 v15, 1, v23
        v_add_u32 v15, {MODF}, v15
        v_mov_b32 v60, 0x3f803f80
        v_mov_b32 v61, 0x3f803f80
        v_mov_b32 v62, 0x3f803f80
        v_mov_b32 v63, 0x3f803f80
        s_waitcnt lgkmcnt(0)
        s_barrier""")
        for st in range(16): a(f"ds_read_b128 {v4(64+4*st)}, v12 offset:{64*st}")
        for st in range(16):
            a(f"{MF} v[56:59], v[60:63], {v4(128+4*st)}, {'v[56:59]' if st else 0}")
            a(f"{MF} v[52:55], {v4(64+4*st)}, {v4(128+4*st)}, {'v[52:55]' if st else 0}")
        a(f"""ds_read_b128 v[32:35], v13
        ds_read_b128 v[36:39], v13 offset:4096
        ds_read_b128 v[40:43], v14 offset:2048
        ds_read_b128 v[44:47], v14 offset:2064
        ds_read_b128 v[16:19], v15 offset:6144
        v_add_f32 v52, v52, v53
        v_add_f32 v53, v54, v55
        v_mov_b32 v54, v56
        v_lshlrev_b32 v22, 16, v22
        ds_read_b128 v[56:59], v14 offset:4096
        ds_read_b128 v[60:63], v14 offset:4112""")
        s.masks(48, 8, 0x3f80)
        a(f"""v_lshlrev_b32 v26, 16, v24
        v_and_b32 v27, 0xffff0000, v24
        v_lshlrev_b32 v28, 16, v25
        v_and_b32 v29, 0xffff0000, v25
        s_lshl_b32 s41, s54, 15
        s_add_u32 s41, s41, s42
        s_add_u32 s41, s41, {AO}
        v_lshlrev_b32 v5, 10, v3
        v_lshl_add_u32 v5, v2, 4, v5
        v_add_u32 v5, s41, v5""")
        for q in range(4): a(f"v_add_u32 v{104+q}, {8192*q+4096}, v5")
        a(f"""v_lshrrev_b32 v10, 1, v3
        v_mul_u32_u24 v10, 1088, v10
        v_add_u32 v10, v9, v10
        v_add_u32 v10, {XH}, v10
        v_and_b32 v11, 1, v2
        v_mul_u32_u24 v11, 1088, v11
        v_lshl_add_u32 v11, v3, 4, v11
        v_add_u32 v11, {XH}, v11
        v_cmp_le_u32 s[58:59], 32, v0
        v_and_b32 v8, 16, v0
        v_cmp_ne_u32 s[60:61], 0, v8
        s_lshl_b32 s49, s38, 5
        s_add_u32 s49, s49, {HH}
        v_lshl_add_u32 v24, v2, 1, s49
        v_lshlrev_b32 v25, 4, v3
        v_add_u32 v25, {HH}, v25
        s_mul_i32 s57, s54, 28
        s_add_u32 s41, s57, s55
        s_lshl_b32 s41, s41, 11
        s_lshl_b32 s49, s38, 9
        s_add_u32 s41, s41, s49
        s_add_u32 s41, s41, {OP}
        v_add_u32 v30, s41, v4
        s_mov_b32 s62, 0xbdd2d3e8
        v_mov_b32 v55, 0xc0135761
        s_waitcnt lgkmcnt(0)""")
        s.stamp(7)
        s.poll("\n".join(f"global_load_dwordx4 {v4(64+4*q)}, v{104+(q>>1)}, s[34:35] offset:{0 if q&1 else -4096} sc1" for q in range(8)), range(64, 96), 8)
        s.stamp(8)
        for q in range(8): a(f"{MF} {v4(96+4*(q&1))}, v[48:51], {v4(64+4*q)}, {v4(96+4*(q&1)) if q>1 else 0}")
        a("""v_pk_add_f32 v[96:97], v[96:97], v[100:101]
        v_pk_add_f32 v[98:99], v[98:99], v[102:103]
        v_pk_fma_f32 v[96:97], v[96:97], v[32:33], v[26:27]
        v_pk_fma_f32 v[98:99], v[98:99], v[34:35], v[28:29]
        v_pk_mul_f32 v[100:101], v[96:97], v[36:37]
        v_pk_mul_f32 v[102:103], v[98:99], v[38:39]""")
        a(f"ds_write_b128 v13, v[96:99] offset:{X1F-MODF}")
        a("""v_cvt_pk_bf16_f32 v104, v100, v101
        v_cvt_pk_bf16_f32 v105, v102, v103
        v_lshlrev_b32 v106, 16, v104
        v_and_b32 v107, 0xffff0000, v104
        v_lshlrev_b32 v108, 16, v105
        v_and_b32 v109, 0xffff0000, v105
        v_pk_add_f32 v[100:101], v[100:101], v[106:107] neg_lo:[0,1] neg_hi:[0,1]
        v_pk_add_f32 v[102:103], v[102:103], v[108:109] neg_lo:[0,1] neg_hi:[0,1]
        v_cvt_pk_bf16_f32 v106, v100, v101
        v_cvt_pk_bf16_f32 v107, v102, v103
        v_cndmask_b32 v104, v104, v106, s[58:59]
        v_cndmask_b32 v105, v105, v107, s[58:59]
        ds_write_b64 v10, v[104:105]
        s_waitcnt lgkmcnt(0)
        s_barrier""")
        a(f"ds_read_b128 v[32:35], v14 offset:{X1F-MODF}\nds_read_b128 v[36:39], v14 offset:{X1F-MODF+16}")
        for st in range(16): a(f"ds_read_b128 {v4(64+4*st)}, v11 offset:{64*st}")
        V = Asm(); sa = s.a; s.a = V
        def sums(R):
            V(f"v_pk_add_f32 v[26:27], {v2(R)}, {v2(R+2)}\nv_pk_mul_f32 v[28:29], {v2(R)}, {v2(R)}")
            V(f"v_pk_add_f32 v[26:27], v[26:27], {v2(R+4)}\nv_pk_fma_f32 v[28:29], {v2(R+2)}, {v2(R+2)}, v[28:29]")
            V(f"v_pk_add_f32 v[26:27], v[26:27], {v2(R+6)}\nv_pk_fma_f32 v[28:29], {v2(R+4)}, {v2(R+4)}, v[28:29]")
            V(f"v_add_f32 v26, v26, v27\nv_pk_fma_f32 v[28:29], {v2(R+6)}, {v2(R+6)}, v[28:29]\nv_add_f32 v28, v28, v29")
            s.ror("v_add_f32", [26, 28], [8, 4, 2, 1]); s.xrow("v_add_f32", [26, 28], [27, 29])
            s.rstd(26, 28, 27)
        sums(32)
        for q in range(4): V(f"v_pk_add_f32 {v2(32+2*q)}, {v2(32+2*q)}, v[26:27] op_sel_hi:[1,0] neg_lo:[0,1] neg_hi:[0,1]")
        for q in range(4): V(f"v_pk_mul_f32 {v2(56+2*q)}, {v2(56+2*q)}, v[28:29] op_sel_hi:[1,0]")
        V("v_mul_f32 v53, v53, v26\nv_mov_b32 v31, v28")
        for q in range(4): V(f"v_pk_fma_f32 {v2(32+2*q)}, {v2(32+2*q)}, {v2(56+2*q)}, {v2(40+2*q)}")
        sums(32)
        V("v_fma_f32 v52, -v26, v54, v52")
        s.a = sa
        vl = V.lines; k = 0; per = (len(vl) + 15) // 16
        for st in range(16):
            for x in vl[k:k+per]: a(x)
            k += per
            a(f"{MF} {v4(44+4*(st&1)) if 0 else v4(48 if st&1 else 8)}, {v4(64+4*st)}, {v4(128+4*st)}, {v4(48 if st&1 else 8) if st>1 else 0}")
        a(f"""v_add_f32 v8, v8, v9
        v_add_f32 v48, v48, v49
        v_sub_f32 v8, v8, v53
        v_add_f32 v8, v8, v48
        v_fma_f32 v8, v8, v31, v52
        v_fma_f32 v8, v8, v28, v22
        v_mul_f32 v9, v8, v8
        v_fma_f32 v9, v9, s62, v55
        v_mul_f32 v9, v9, v8
        v_exp_f32 v9, v9
        v_add_f32 v9, 1.0, v9
        v_rcp_f32 v9, v9
        v_mul_f32 v8, v8, v9
        v_cvt_pk_bf16_f32 v8, v8, v8
        ds_write_b16 v24, v8
        s_waitcnt lgkmcnt(0)
        s_barrier
        ds_read_b128 v[32:35], v25
        ds_read_b128 v[36:39], v25 offset:64""")
        for st in range(2):
            for i in (0, 4, 1, 5, 2, 6, 3, 7): a(f"{MF} {v4(64+4*i)}, {v4(32+4*st)}, {v4(192+32*st+4*i)}, {v4(64+4*i) if st else 0}")
        for r in range(4): a(f"v_cndmask_b32 v{40+r}, v{64+4*r}, v{80+4*r}, s[60:61]")
        a("""s_mov_b32 exec_hi, 0
        global_store_dwordx4 v30, v[40:43], s[34:35] sc1
        s_mov_b32 exec_hi, -1""")
        s.stamp(9)
        a(f"""s_cmp_lg_u32 s38, 0
        s_cbranch_scc1 FIN
        s_cmp_ge_u32 s55, 16
        s_cbranch_scc1 FIN
        s_lshl_b32 s41, s57, 11
        s_lshl_b32 s49, s55, 7
        s_add_u32 s41, s41, s49
        s_add_u32 s41, s41, {OP}
        v_lshrrev_b32 v8, 3, v0
        v_lshl_add_u32 v9, v7, 4, s41
        v_lshl_add_u32 v10, v8, 11, v9
        v_add_u32 v11, 16384, v10
        v_add_u32 v12, 32768, v10
        v_and_b32 v8, 3, v8
        v_lshl_add_u32 v13, v8, 11, v9
        v_add_u32 v13, 49152, v13
        ds_read_b128 v[32:35], v15 offset:{X1F-MODF}
        v_lshlrev_b32 v36, 16, v20
        v_and_b32 v37, 0xffff0000, v20
        v_lshlrev_b32 v38, 16, v21
        v_and_b32 v39, 0xffff0000, v21
        v_add_u32 v23, s43, v23
        v_pk_fma_f32 v[32:33], v[36:37], v[16:17], v[32:33]
        v_pk_fma_f32 v[34:35], v[38:39], v[18:19], v[34:35]""")
        s.poll("\n".join(f"global_load_dwordx4 {v4(64+4*q)}, v{10+q}, s[34:35] sc1" for q in range(4)), range(64, 80), 8)
        s.stamp(10)
        a("""v_pk_add_f32 v[64:65], v[64:65], v[68:69]
        v_pk_add_f32 v[66:67], v[66:67], v[70:71]
        s_mov_b32 exec_hi, 0
        v_pk_add_f32 v[72:73], v[72:73], v[76:77]
        v_pk_add_f32 v[74:75], v[74:75], v[78:79]
        s_mov_b32 exec_hi, -1
        v_pk_add_f32 v[64:65], v[64:65], v[72:73]
        v_pk_add_f32 v[66:67], v[66:67], v[74:75]""")
        s.ror("v_add_f32", [64, 65, 66, 67], [8]); s.xrow("v_add_f32", [64, 65, 66, 67], [68, 69, 70, 71])
        a("""v_pk_fma_f32 v[32:33], v[64:65], v[16:17], v[32:33]
        v_pk_fma_f32 v[34:35], v[66:67], v[18:19], v[34:35]
        v_cvt_pk_bf16_f32 v32, v32, v33
        v_cvt_pk_bf16_f32 v33, v34, v35
        s_mov_b64 exec, 0xff
        global_store_dwordx2 v23, v[32:33], s[30:31]
        s_mov_b64 exec, -1""")
        s.stamp(11)
        a("s_branch FIN")
    def role_E(s):
        a = s.a; nt = s.nt
        EB, EX = 0, 4096
        a(f"""ROLE_E:
        s_sub_u32 s40, s37, 7
        s_and_b32 s54, s40, 1
        s_lshr_b32 s40, s40, 1
        s_lshl_b32 s40, s40, 3
        s_add_u32 s50, s40, s36
        s_lshl_b32 s41, s38, 20
        s_lshl_b32 s42, s50, 8
        s_add_u32 s41, s41, s42
        s_lshl_b32 s43, s54, 7
        s_add_u32 s43, s43, s41
        v_lshlrev_b32 v5, 16, v3
        v_lshl_add_u32 v5, v6, 18, v5
        v_lshl_add_u32 v5, v7, 4, v5
        s_add_u32 s44, s8, s43
        s_addc_u32 s45, s9, 0
        s_add_u32 s46, s44, 8192
        s_addc_u32 s47, s45, 0""")
        for kk in range(2):
            for r in range(8):
                a(f"global_load_dwordx4 {v4(64+32*kk+4*r)}, v5, s[{46 if r&1 else 44}:{47 if r&1 else 45}]{nt}")
                if r & 1 and (kk, r) != (1, 7): a(f"v_add_u32 v5, {16384 if r<7 else (64-6)*8192}, v5")
        s.flagload(1, 27)
        a(f"""v_mov_b32 v29, -1
        v_mov_b32 v30, -1
        v_mov_b32 v31, -1
        s_lshl_b32 s43, s50, 12
        s_lshl_b32 s49, s54, 11
        s_add_u32 s43, s43, s49
        s_add_u32 s43, s43, {Q1}
        s_lshl_b32 s49, s38, 9
        s_add_u32 s49, s49, s43
        v_lshl_add_u32 v8, v0, 3, s49
        global_store_dwordx2 v8, v[28:29], s[34:35] sc1
        s_lshl_b32 s51, s54, 5
        s_add_u32 s51, s51, s50
        s_lshl_b32 s52, s51, 10
        s_lshl_b32 s49, s38, 8
        s_add_u32 s52, s52, s49
        s_add_u32 s52, s52, {AO}
        v_add_u32 v8, s52, v1
        global_store_dword v8, v28, s[34:35] sc1
        s_lshl_b32 s53, s51, 8
        s_add_u32 s53, s53, {ST}
        v_add_u32 v8, s53, v1
        global_store_dword v8, v28, s[34:35] sc1
        s_lshr_b32 s55, s51, 4
        s_lshl_b32 s55, s55, 19
        s_and_b32 s49, s50, 15
        s_lshl_b32 s49, s49, 10
        s_add_u32 s55, s55, s49
        s_add_u32 s55, s55, {PT}
        s_lshl_b32 s49, s38, 17
        s_add_u32 s49, s49, s55
        v_add_u32 v8, s49, v4""")
        for k in range(8):
            a(f"global_store_dwordx4 v8, v[28:31], s[34:35] sc1 ; @w:clrE")
            if k < 7: a("v_add_u32 v8, 16384, v8")
        a(f"""s_lshl_b32 s49, s38, 11
        v_lshl_add_u32 v9, v6, 9, s49
        v_lshl_add_u32 v9, v3, 7, v9
        v_lshl_add_u32 v9, v7, 4, v9
        s_lshl_b32 s49, s38, 5
        s_add_u32 s49, s49, s43
        v_lshl_add_u32 v10, v7, 8, s49
        v_and_b32 v11, 1, v3
        v_lshl_add_u32 v10, v11, 7, v10
        v_lshl_add_u32 v10, v6, 4, v10""")
        s.perm(64, 128); s.perm(96, 160)
        s.stamp(1)
        s.flagwait(1, 27, FP)
        h1 = "global_load_dwordx4 v[12:15], v9, s[34:35] sc1\nglobal_load_dwordx4 v[16:19], v9, s[34:35] offset:1024 sc1"
        a(h1)
        a("WAIT clrE\ns_barrier"); s.setflag(20, 21)
        s.stamp(2)
        s.poll(h1, range(12, 20), 8, issued=True)
        s.stamp(3)
        for kk in range(2):
            for i in range(8): a(f"{MF} {v4(32+4*i)}, {v4(12+4*kk)}, {v4(128+32*kk+4*i)}, {v4(32+4*i) if kk else 0}")
        a(f"""s_add_u32 s44, s12, s41
        s_addc_u32 s45, s13, 0
        s_lshl_b32 s49, s54, 15
        v_lshl_add_u32 v5, v3, 13, s49
        v_lshl_add_u32 v5, v2, 4, v5""")
        for i in range(8): a(f"v_pk_add_f32 {v2(32+4*i)}, {v2(32+4*i)}, {v2(34+4*i)}\nv_add_f32 v{32+4*i}, v{32+4*i}, v{33+4*i}")
        for q in range(4): a(f"v_cvt_pk_bf16_f32 v{12+q}, v{32+8*q}, v{36+8*q}")
        a("""s_mov_b32 exec_lo, 0x00ff00ff
        s_mov_b32 exec_hi, 0xff00ff00
        global_store_dwordx4 v10, v[12:15], s[34:35] sc1
        s_mov_b64 exec, -1""")
        s.stamp(4)
        a(f"""s_lshl_b32 s41, s50, 17
        s_lshl_b32 s49, s38, 8
        s_add_u32 s41, s41, s49
        s_add_u32 s41, s41, 4096
        s_add_u32 s46, s14, s41
        s_addc_u32 s47, s15, 0""")
        def ld(n):
            T = 32 + 32 * (n % 3)
            if n < 4:
                for e in range(8):
                    a(f"v_xor_b32 v8, {((n&1)<<15) | ((64*(n>>1)+16*(e&3)+8*(e>>2))<<13)}, v5\nglobal_load_dwordx4 {v4(T+4*e)}, v8, s[44:45]{nt}")
            else:
                a(f"v_xor_b32 v8, {(n-4)<<15}, v5")
                for r in range(8): a(f"global_load_dwordx4 {v4(T+4*r)}, v8, s[46:47] offset:{1024*r-4096}{nt}")
        ld(0); ld(1)
        for n in range(8):
            if n + 2 < 8: ld(n + 2)
            if n < 4: s.perm(32 + 32 * (n % 3), 32 * n, True, 22)
            else: s.perm(32 + 32 * (n % 3), 128 + 32 * (n - 4))
        s.masks(24, 8)
        a(f"""v_lshrrev_b32 v8, 3, v0
        v_lshl_add_u32 v9, v8, 3, s53
        s_lshl_b32 s49, s38, 8
        s_add_u32 s55, s55, s49
        v_lshl_add_u32 v10, v8, 14, s55
        v_lshl_add_u32 v10, v7, 4, v10
        v_add_u32 v11, {1<<17}, v10
        v_add_u32 v12, {2<<17}, v10
        v_add_u32 v13, {3<<17}, v10
        s_lshl_b32 s49, s38, 9
        v_lshl_add_u32 v14, v2, 4, s49
        v_and_b32 v8, 1, v3
        v_lshl_add_u32 v14, v8, 3, v14
        s_lshl_b32 s40, s54, 6
        v_and_b32 v8, 1, v2
        v_lshl_add_u32 v15, v8, 7, s49
        v_lshl_add_u32 v15, v3, 4, v15
        v_add_u32 v15, s40, v15
        v_xor_b32 v16, 64, v15
        s_lshl_b32 s49, s38, 8
        s_add_u32 s49, s49, {EX}
        v_lshl_add_u32 v17, v2, 4, s49
        v_and_b32 v8, 3, v2
        v_lshlrev_b32 v18, 8, v8
        v_lshl_add_u32 v18, v3, 4, v18
        v_add_u32 v18, s40, v18
        v_xor_b32 v19, 64, v18
        v_lshl_add_u32 v20, v2, 4, s52""")
        s.stamp(5)
        s.poll("\n".join(f"global_load_dwordx2 {v2(32+2*q)}, v9, s[34:35] offset:{64*q} sc1" for q in range(4)), range(32, 40), 8)
        s.stamp(6)
        ptl = lambda hf: "\n".join(f"global_load_dwordx4 {v4(64+16*hf+4*q)}, v{10+q}, s[34:35] offset:{128*hf} sc1" for q in range(4))
        a(ptl(0))
        a("v_max_f32 v40, v32, v34\nv_max3_f32 v40, v40, v36, v38")
        s.ror("v_max_f32", [40], [8]); s.xrow("v_max_f32", [40], [41])
        for q in range(4): a(f"v_sub_f32 v{32+2*q}, v{32+2*q}, v40")
        for q in range(4): a(f"v_exp_f32 v{32+2*q}, v{32+2*q}")
        for q in range(4): a(f"v_cvt_pk_bf16_f32 v{32+2*q}, v{32+2*q}, v{32+2*q}")
        for q in range(4):
            for m in range(4): a(f"v_and_b32 v{48+4*q+m}, v{24+m}, v{32+2*q}")
        for q in range(4): a(f"v_and_b32 v{32+2*q}, 0xffff0000, v{32+2*q}")
        a("v_mul_f32 v40, v32, v33\nv_fmac_f32 v40, v34, v35\nv_fmac_f32 v40, v36, v37\nv_fmac_f32 v40, v38, v39")
        s.ror("v_add_f32", [40], [8]); s.xrow("v_add_f32", [40], [41])
        a("v_rcp_f32 v40, v40")
        for hf in range(2):
            s.poll(ptl(hf), range(64 + 16 * hf, 80 + 16 * hf), 8, issued=True)
            s.stamp(7 + hf)
            if hf == 0: a(ptl(1))
            for q in range(4): a(f"{MF} v[44:47], {v4(48+4*q)}, {v4(64+16*hf+4*q)}, {'v[44:47]' if q else 0}")
            a(f"""v_pk_mul_f32 v[44:45], v[44:45], v[40:41] op_sel_hi:[1,0]
            v_pk_mul_f32 v[46:47], v[46:47], v[40:41] op_sel_hi:[1,0]
            v_cvt_pk_bf16_f32 v42, v44, v45
            v_cvt_pk_bf16_f32 v43, v46, v47
            s_mov_b32 exec_lo, 0x00ff00ff
            s_mov_b32 exec_hi, 0xff00ff00
            ds_write_b64 v14, v[42:43] offset:{256*hf}
            s_mov_b64 exec, -1
            ds_read_b128 v[32:35], v15 offset:{256*hf}
            ds_read_b128 v[36:39], v16 offset:{256*hf}""")
            for k in range(2):
                n = 2 * hf + k
                for i in range(8): a(f"{MF} {v4(96+4*i)}, {v4(32+4*k)}, {v4(32*n+4*i,'a')}, {v4(96+4*i) if n else 0}")
        for i in range(8): a(f"v_add_f32 v{96+4*i}, v{96+4*i}, v{97+4*i}")
        for q in range(4): a(f"v_cvt_pk_bf16_f32 v{32+q}, v{96+8*q}, v{100+8*q}")
        a(f"""s_mov_b64 exec, 0xffff
        ds_write_b128 v17, v[32:35]
        s_mov_b64 exec, -1
        s_waitcnt lgkmcnt(0)
        s_barrier""")
        for n in range(4): a(f"ds_read_b128 {v4(64+4*n)}, v{18+(n&1)} offset:{EX+128*(n>>1)}")
        for n in range(4):
            for i in range(8): a(f"{MF} {v4(96+4*i)}, {v4(64+4*n)}, {v4(128+32*n+4*i)}, {v4(96+4*i) if n else 0}")
        for i in range(8): a(f"v_pk_add_f32 {v2(96+4*i)}, {v2(96+4*i)}, {v2(98+4*i)}\nv_add_f32 v{96+4*i}, v{96+4*i}, v{97+4*i}")
        for q in range(4): a(f"v_cvt_pk_bf16_f32 v{32+q}, v{96+8*q}, v{100+8*q}")
        a("""s_mov_b64 exec, 0xffff
        global_store_dwordx4 v20, v[32:35], s[34:35] sc1
        s_mov_b64 exec, -1""")
        s.stamp(9)
        a("s_branch FIN")
    def role_A(s):
        a = s.a; nt = s.p.get("ntA", s.nt)
        a(f"""ROLE_A:
        s_sub_u32 s40, s37, 15
        s_and_b32 s50, s40, 1
        s_lshr_b32 s40, s40, 1
        s_lshl_b32 s40, s40, 3
        s_add_u32 s51, s40, s36
        s_lshl_b32 s41, s51, 18
        s_lshl_b32 s42, s38, 12
        s_add_u32 s41, s41, s42
        s_mul_i32 s43, s50, {s.p['stg']<<14}
        v_add_u32 v5, s43, v4
        s_mul_i32 s42, s38, 4224
        s_add_u32 s44, s6, s41
        s_addc_u32 s45, s7, 0""")
        def dma(n):
            a(f"v_xor_b32 v8, {n<<14}, v5")
            for r in range(4): a(f"s_add_u32 m0, s42, {(n&7)*16896+r*32}\nglobal_load_lds_dwordx4 v8, s[44:45] offset:{1024*r}{nt} ; @w:c{n}")
        for n in range(4): dma(n)
        a(f"""v_lshrrev_b32 v9, 2, v0
        v_mul_u32_u24 v9, 1056, v9
        v_and_b32 v10, 3, v0
        v_lshl_add_u32 v9, v10, 3, v9
        s_lshl_b32 s43, s38, 8
        v_add_u32 v9, s43, v9
        v_add_u32 v10, 67584, v9
        v_mul_u32_u24 v13, 1056, v2
        v_lshl_add_u32 v13, v3, 4, v13
        s_mul_i32 s49, s38, 16896
        v_add_u32 v11, s49, v13
        v_add_u32 v12, 67584, v11
        v_add_u32 v13, {QAS}, v13
        s_lshr_b32 s52, s51, 5
        s_and_b32 s53, s51, 31
        s_lshl_b32 s52, s52, 1
        s_add_u32 s52, s52, s50
        s_lshl_b32 s49, s52, 14
        s_lshl_b32 s41, s38, 12
        s_add_u32 s49, s49, s41
        s_add_u32 s49, s49, {QA}
        v_add_u32 v14, s49, v4
        s_add_u32 s49, s42, {QAS}
        v_add_u32 v15, s49, v4""")
        qal = "\n".join(f"global_load_dwordx4 {v4(32+4*k)}, v14, s[34:35] offset:{1024*k} sc1" for k in range(4))
        def qk(t):
            for st in range(16): a(f"ds_read_b128 {v4(16*st+4*t,'a')}, v{11+(t&1)} offset:{64*st}")
        for n in range(16):
            a(f"WAIT c{n}\ns_waitcnt lgkmcnt(0)\ns_barrier")
            if n in (0, 7, 15): s.stamp({0: 1, 7: 2, 15: 3}[n])
            if n + 4 < 16: dma(n + 4)
            if n == 8: s.flagload(1, 27)
            if n < 8:
                for T in range(8): a(f"ds_read_b64_tr_b16 {v2(128+32*(n&3)+4*T+2*(n>>2))}, v{9+(n>>2)} offset:{(n&3)*16896+32*T}")
            if n in (3, 7, 11): qk(n >> 2)
            if n >= 12:
                L = a.newlabel("AQ")
                a(f"s_cmp_lg_u32 s38, {n&3}\ns_cbranch_scc1 {L}"); qk(3); a(f"{L}:")
            if n == 9:
                a(f"""v_lshlrev_b32 v8, 4, v2
                v_add_u32 v48, {MX}, v8
                s_lshl_b32 s49, s38, 2
                v_add_u32 v49, s49, v48
                s_lshl_b32 s49, s38, 10
                s_add_u32 s49, s49, {PX}
                v_add_u32 v50, s49, v4
                v_add_u32 v51, {PX}, v4
                s_lshl_b32 s49, s52, 12
                s_lshl_b32 s41, s53, 3
                s_add_u32 s49, s49, s41
                s_add_u32 s49, s49, {ST}
                v_lshl_add_u32 v52, v2, 8, s49
                s_lshl_b32 s49, s52, 19
                s_lshl_b32 s41, s53, 14
                s_add_u32 s49, s49, s41
                s_add_u32 s49, s49, s43
                s_add_u32 s49, s49, {PT}
                v_lshl_add_u32 v53, v3, 12, s49
                v_lshl_add_u32 v53, v6, 10, v53
                v_lshl_add_u32 v53, v7, 4, v53""")
            if n == 13: s.flagwait(1, 27, FALL); a(qal)
        s.poll(qal, range(32, 48), 8, issued=True)
        s.stamp(4)
        for k in range(4): a(f"ds_write_b128 v15, {v4(32+4*k)} offset:{1056*k}")
        a("s_waitcnt lgkmcnt(0)\ns_barrier")
        for st in range(16): a(f"ds_read_b128 {v4(64+4*st)}, v13 offset:{64*st}")
        for st in range(16):
            if st == 5: a("s_waitcnt lgkmcnt(0)")
            for t in range(4):
                a(f"{MF} {v4(16+4*t)}, {v4(16*st+4*t,'a')}, {v4(64+4*st)}, {v4(16+4*t) if st else 0}")
                if 5 <= st < 13:
                    k = st - 5; u = k >> 1; T = 4 * (k & 1) + t
                    for h in range(2): a(f"ds_read_b64_tr_b16 {v2(32*u+4*T+2*h,'a')}, v{9+h} offset:{u*16896+32*T}")
        s.stamp(5)
        a("v_max3_f32 v32, v16, v17, v18")
        for k in range(6): a(f"v_max3_f32 v32, v32, v{19+2*k}, v{20+2*k}")
        a("v_max_f32 v32, v32, v31")
        s.xrow("v_max_f32", [32], [33])
        a("""ds_write_b32 v49, v32
        s_waitcnt lgkmcnt(0)
        s_barrier
        ds_read_b128 v[32:35], v48
        v_max3_f32 v32, v32, v33, v34
        v_max_f32 v54, v32, v35""")
        for k in range(8): a(f"v_pk_add_f32 {v2(16+2*k)}, {v2(16+2*k)}, v[54:55] op_sel_hi:[1,0] neg_lo:[0,1] neg_hi:[0,1]")
        for k in range(8):
            a(f"v_exp_f32 v{16+2*k}, v{16+2*k}\nv_exp_f32 v{17+2*k}, v{17+2*k}")
            if k: a(f"v_cvt_pk_bf16_f32 v{35+k}, v{14+2*k}, v{15+2*k}")
            if k == 4: a("ds_write_b128 v50, v[36:39]")
        a("v_cvt_pk_bf16_f32 v43, v30, v31\nds_write_b128 v50, v[40:43] offset:4096")
        for k in range(4): a(f"v_pk_add_f32 {v2(16+2*k)}, {v2(16+2*k)}, {v2(24+2*k)}")
        a("v_pk_add_f32 v[16:17], v[16:17], v[20:21]\nv_pk_add_f32 v[18:19], v[18:19], v[22:23]\nv_pk_add_f32 v[16:17], v[16:17], v[18:19]\nv_add_f32 v16, v16, v17")
        s.xrow("v_add_f32", [16], [17])
        a(f"ds_write_b32 v49, v16 offset:{LX-MX}\ns_waitcnt lgkmcnt(0)\ns_barrier")
        s.stamp(6)
        for k in range(8): a(f"ds_read_b128 {v4(64+4*k)}, v51 offset:{1024*k}")
        L = a.newlabel("AS")
        a(f"""s_cmp_lg_u32 s38, 3
        s_cbranch_scc1 {L}
        ds_read_b128 v[32:35], v48 offset:{LX-MX}
        v_add_f32 v32, v32, v33
        v_add_f32 v34, v34, v35
        v_add_f32 v55, v32, v34
        s_mov_b64 exec, 0xffff
        global_store_dwordx2 v52, v[54:55], s[34:35] sc1
        s_mov_b64 exec, -1
        {L}:""")
        def epi(hf):
            o = []; D = 96 + 16 * hf
            for r0 in (0, 2):
                O = 16 + 4 * r0 + 16 * hf; t = 56 + r0
                for p in range(2):
                    o.append(f"v_cvt_pk_bf16_f32 v{O+p}, v{D+8*p+r0}, v{D+8*p+4+r0}")
                    o.append(f"v_cvt_pk_bf16_f32 v{O+2+p}, v{D+8*p+r0+1}, v{D+8*p+4+r0+1}")
                    o.append(f"v_cvt_pk_bf16_f32 v{t+p}, v{D+8*p+r0}, v{D+8*p+4+r0}")
                for p in range(2): o.append(f"v_mov_b32_dpp v{O+p}, v{O+2+p} row_ror:8 row_mask:0xf bank_mask:0xc")
                for p in range(2): o.append(f"v_mov_b32_dpp v{O+2+p}, v{t+p} row_ror:8 row_mask:0xf bank_mask:0x3")
                o.append(f"global_store_dwordx4 v53, {v4(O)}, s[34:35] offset:{1024*r0+128*hf} sc1")
            return o
        for hf in range(2):
            e = epi(0) if hf else []; m = 0
            for k in range(8):
                for t4 in range(4):
                    T = 4 * hf + t4
                    B = v4(128 + 32 * k + 4 * T) if k < 4 else v4(32 * (k - 4) + 4 * T, 'a')
                    a(f"{MF} {v4(96+4*T)}, {v4(64+4*k)}, {B}, {v4(96+4*T) if k else 0}")
                    m += 1
                    if m >= 3:
                        for x in e[:3]: a(x)
                        e = e[3:]
            if hf == 0: s.stamp(7)
        for x in epi(1): a(x)
        s.stamp(8)
    def fin(s):
        a = s.a
        a("FIN:")
        if s.p["dbg"] == 2:
            k, lo, hi = s.p["probe"]
            a("s_waitcnt vmcnt(0)"); s.stamp(14)
            a(f"""s_waitcnt lgkmcnt(0)
            s_cmp_lt_u32 s2, {lo}
            s_cbranch_scc1 END
            s_cmp_ge_u32 s2, {hi}
            s_cbranch_scc1 END
            s_cmp_eq_u32 s{70+2*k}, 0
            s_cbranch_scc1 END
            s_mov_b32 s69, 100000
            PRB:
            s_memrealtime s[40:41]
            s_waitcnt lgkmcnt(0)
            s_sub_u32 s40, s40, s{70+2*k}
            s_cmp_ge_u32 s40, 4000
            s_cbranch_scc1 END
            s_sub_u32 s69, s69, 1
            s_cbranch_scc0 PRB""")
        if s.p["dbg"] == 1:
            a("s_waitcnt vmcnt(0)"); s.stamp(14)
            a("s_waitcnt lgkmcnt(0)\nv_mov_b32 v8, 0")
            for k in range(15): a(f"v_writelane_b32 v8, s{70+2*k}, {k}")
            a(f"""s_lshl_b32 s41, s2, 2
            s_add_u32 s41, s41, s38
            s_lshl_b32 s41, s41, 8
            s_add_u32 s41, s41, {STAMP}
            v_add_u32 v9, s41, v1
            global_store_dword v9, v8, s[34:35]""")
        a("END:\ns_endpgm\nCODE_END:")
    def build(s):
        if s.p["dbg"]:
            for k in range(1, 15): s.a(f"s_mov_b32 s{70+2*k}, 0")
        s.prologue(); s.role_P(); s.role_QI(); s.role_I(); s.g_main(); s.role_E(); s.role_A(); s.fin()
        return wrap(s.a.text(), 248, 256, LDS, 256, 256)
if __name__ == "__main__":
    kw = eval("dict(" + (sys.argv[2] if len(sys.argv) > 2 else "") + ")")
    open(sys.argv[1], "w").write(G(**kw).build())
```

```python
import sys
from asm2 import *
H1, Q1, ST, QA, MD, OP, AO, PT, STAMP = 0, 0x10000, 0x30000, 0x40000, 0x50000, 0x60000, 0x80000, 0x100000, 0x400000
SCR = 131072
MODF, HL, X1F, XH, HH, RED = SCR, SCR + 8192, SCR + 16896, SCR + 18944, SCR + 21120, SCR + 21504
QAS, PX, MX, LX = 135168, 152064, 160256, 160512
LDS = 160768
MF = "v_mfma_f32_16x16x32_bf16"
FLG, EPO = 0x38000, 0x3FC00
Q1L = SCR
DEF = dict(dbg=0, nt=1, stg=1, pre=0, tmo=1 << 16, codekb=28, fl=0)
def v4(n, p="v"): return f"{p}[{n}:{n+3}]"
def v2(n, p="v"): return f"{p}[{n}:{n+1}]"
class G:
    def __init__(s, **kw):
        s.p = dict(DEF); s.p.update(kw); s.a = Asm(); s.nt = " nt" if s.p["nt"] else ""
    def stamp(s, k):
        if s.p["dbg"]: s.a(f"s_memrealtime s[{70+2*k}:{71+2*k}]")
    def chk(s, regs, t):
        a = s.a; r = list(regs)
        if len(r) % 2 == 0: a(f"v_max_u32 v{t}, v{r[0]}, v{r[1]}"); r = r[2:]
        else: a(f"v_max3_u32 v{t}, v{r[0]}, v{r[1]}, v{r[2]}"); r = r[3:]
        for k in range(0, len(r), 2): a(f"v_max3_u32 v{t}, v{t}, v{r[k]}, v{r[k+1]}")
        a(f"v_cmp_eq_u32 vcc, -1, v{t}")
    def poll(s, loads, regs, t, issued=False):
        a = s.a; L, C, D = a.newlabel("PL"), a.newlabel("PC"), a.newlabel("PD")
        a(f"s_mov_b32 s69, {s.p['tmo']}")
        if issued: a(f"s_branch {C}")
        a(f"{L}:"); a(loads); a(f"{C}:")
        s.chk(regs, t)
        a(f"s_cbranch_vccz {D}\ns_sub_u32 s69, s69, 1\ns_cbranch_scc0 {L}\n{D}:")
    def epoch(s): s.a(f"s_load_dword s63, s[34:35], {EPO}")
    def mktag(s): s.a("s_mul_i32 s63, s63, 0x9e3779b1\ns_add_u32 s63, s63, 0x7f4a7c15")
    def flagaddr(s, va, lo, hi):
        s.a(f"v_add_u32 v{va}, {lo}, v0\nv_min_u32 v{va}, {hi}, v{va}\nv_lshlrev_b32 v{va}, 7, v{va}\nv_add_u32 v{va}, {FLG}, v{va}")
    def flagload(s, va, vd):
        s.a(f"global_load_dword v{vd}, v{va}, s[34:35] sc1")
    def flagwait(s, va, vd, issued=True):
        a = s.a; L, D = a.newlabel("FL"), a.newlabel("FD")
        ck = f"v_cmp_ne_u32 vcc, s63, v{vd}\ns_cbranch_vccz {D}"
        if issued: a(ck)
        a(f"s_mov_b32 s69, {s.p['tmo']}\n{L}:"); s.flagload(va, vd); a(ck)
        a(f"s_sub_u32 s69, s69, 1\ns_cbranch_scc0 {L}\n{D}:")
    def setflag(s, t0, t1):
        s.a(f"""s_lshl_b32 s68, s2, 7
        s_add_u32 s68, s68, {FLG}
        v_add_u32 v{t0}, s68, v1
        v_mov_b32 v{t1}, s63
        s_cmp_eq_u32 s38, 0
        s_cselect_b32 exec_lo, -1, 0
        s_mov_b32 exec_hi, 0
        global_store_dword v{t0}, v{t1}, s[34:35] sc1
        s_mov_b64 exec, -1""")
    def gidx(s):
        s.a(f"""s_mul_i32 s53, s36, 7
        s_add_u32 s53, s53, s37
        s_and_b32 s54, s53, 1
        s_lshr_b32 s55, s53, 1
        s_mul_i32 s57, s54, 28
        s_add_u32 s41, s57, s55
        s_lshl_b32 s41, s41, 11
        s_lshl_b32 s49, s38, 9
        s_add_u32 s41, s41, s49
        s_add_u32 s41, s41, {OP}
        v_lshl_add_u32 v8, v0, 3, s41
        global_store_dwordx2 v8, v[28:29], s[34:35] sc1 ; @w:clr""")
    def qaclr(s, nb):
        s.a(f"""s_lshl_b32 s56, s50, 10
        s_add_u32 s56, s56, s52
        s_add_u32 s56, s56, {QA}
        v_lshrrev_b32 v8, 5, v0
        v_lshl_add_u32 v8, v8, 15, s56
        v_and_b32 v9, 31, v0
        v_lshl_add_u32 v8, v9, {1+nb}, v8
        global_store_dword{'x2' if nb==2 else ''} v8, {'v[28:29]' if nb==2 else 'v28'}, s[34:35] sc1 ; @w:clr""")
    def masks(s, m, t, val=0xFFFF):
        a = s.a
        a(f"""v_and_b32 v{t}, 1, v2
        v_lshlrev_b32 v{t}, 4, v{t}
        v_mov_b32 v{m+3}, {val}
        v_lshlrev_b32 v{m+3}, v{t}, v{m+3}
        v_bfe_u32 v{t}, v2, 1, 2""")
        for q in range(4):
            a(f"v_cmp_eq_u32 vcc, {q}, v{t}\nv_cndmask_b32 v{m+q}, 0, v{m+3}, vcc")
    def ror(s, op, regs, amts):
        for n in amts:
            for r in regs: s.a(f"{op}_dpp v{r}, v{r}, v{r} row_ror:{n} row_mask:0xf bank_mask:0xf")
    def xrow(s, op, regs, tmps, which=(16, 32)):
        for w in which:
            for r, t in zip(regs, tmps): s.a(f"v_mov_b32 v{t}, v{r}")
            for r, t in zip(regs, tmps): s.a(f"v_permlane{w}_swap_b32 v{r}, v{t}")
            for r, t in zip(regs, tmps): s.a(f"{op} v{r}, v{r}, v{t}")
    def perm(s, src, dst, agpr=False, tmp=None):
        out = []
        for p in range(4):
            for i in range(8):
                d = dst + 4 * i + p; sel = "s67" if i & 1 else "s66"
                x, y = src + 4 * (2 * p + 1) + (i >> 1), src + 4 * (2 * p) + (i >> 1)
                if agpr: out.append(f"v_perm_b32 v{tmp+(i&1)}, v{x}, v{y}, {sel}\nv_accvgpr_write_b32 a{d}, v{tmp+(i&1)}")
                else: out.append(f"v_perm_b32 v{d}, v{x}, v{y}, {sel}")
        s.a("\n".join(out))
    def rstd(s, S, Q, t):
        s.a(f"""v_mul_f32 v{S}, 0x3b000000, v{S}
        v_mul_f32 v{t}, v{S}, v{S}
        v_fma_f32 v{Q}, v{Q}, s65, -v{t}
        v_max_f32 v{Q}, 0, v{Q}
        v_add_f32 v{Q}, 0x3727c5ac, v{Q}
        v_rsq_f32 v{Q}, v{Q}""")
    def prologue(s):
        a = s.a
        a("s_load_dwordx16 s[4:19], s[0:1], 0\ns_load_dwordx16 s[20:35], s[0:1], 64")
        s.stamp(0)
        a(f"""s_cmp_ge_u32 s2, 248
        s_cbranch_scc1 END
        v_lshrrev_b32 v1, 6, v0
        v_and_b32 v0, 63, v0
        s_and_b32 s36, s2, 7
        s_lshr_b32 s37, s2, 3
        v_readfirstlane_b32 s38, v1
        v_and_b32 v2, 15, v0
        v_lshrrev_b32 v3, 4, v0
        v_lshlrev_b32 v4, 4, v0
        v_lshlrev_b32 v1, 2, v0
        v_lshrrev_b32 v6, 3, v2
        v_and_b32 v7, 7, v2
        v_mov_b32 v28, -1
        v_mov_b32 v29, -1
        s_mov_b32 s66, 0x05040100
        s_mov_b32 s67, 0x07060302
        s_mov_b32 s65, 0x3b000000
        s_cmp_ge_u32 s37, 15
        s_cbranch_scc1 ROLE_A
        s_cmp_ge_u32 s37, 7
        s_cbranch_scc1 ROLE_E
        s_cmp_ge_u32 s37, 4
        s_cbranch_scc1 ROLE_QI""")
    def uk_setup(s):
        s.a(f"""s_add_u32 s46, s10, s43
        s_addc_u32 s47, s11, 0
        v_lshlrev_b32 v26, 13, v3
        v_lshl_add_u32 v26, v2, 4, v26
        s_lshl_b32 s48, s38, 15""")
    def uk_dma(s, n):
        s.a(f"""v_xor_b32 v27, {((n & 15) << 4) | (n << 15)}, v26
        s_add_u32 m0, s48, {n*1024}
        global_load_lds_dwordx4 v27, s[46:47]{s.nt} ; @w:uk{n}""")
    def role_P(s):
        a = s.a; nt = s.nt
        a(f"""s_lshl_b32 s40, s37, 2
        s_add_u32 s40, s40, s38
        s_mul_i32 s41, s40, 196608
        s_lshl_b32 s42, s36, 7
        s_add_u32 s41, s41, s42
        s_add_u32 s41, s41, 3072
        v_mul_u32_u24 v5, 49152, v3
        v_lshl_add_u32 v5, v6, 10, v5
        v_lshl_add_u32 v5, v7, 4, v5
        s_lshl_b32 s43, s40, 6
        v_lshl_add_u32 v8, v6, 10, s43
        v_lshl_add_u32 v8, v3, 4, v8
        v_lshlrev_b32 v9, 5, v0
        v_lshrrev_b32 v10, 1, v3
        v_lshl_add_u32 v10, v10, 10, s42
        v_lshl_add_u32 v10, v7, 4, v10
        v_and_b32 v11, 1, v3
        v_lshl_add_u32 v10, v11, 3, v10
        s_add_u32 s44, s28, s41
        s_addc_u32 s45, s29, 0
        global_load_dwordx4 v[12:15], v8, s[26:27]""")
        for t in range(8):
            a(f"global_load_dwordx4 {v4(32+4*t)}, v5, s[44:45] offset:{3072 if t&1 else -3072}{nt}")
            if t == 1: a("global_load_dwordx4 v[16:19], v9, s[4:5]\nglobal_load_dwordx4 v[20:23], v9, s[4:5] offset:16\nglobal_load_dwordx2 v[24:25], v10, s[4:5]")
            if t & 1 and t < 7: a("v_add_u32 v5, 12288, v5")
        s.epoch()
        a(f"""s_and_b32 s50, s2, 15
        s_lshr_b32 s51, s2, 4
        s_lshl_b32 s43, s51, 2
        s_add_u32 s43, s43, s38
        s_lshl_b32 s52, s43, 7
        s_lshl_b32 s43, s43, 19
        s_lshl_b32 s49, s50, 8
        s_add_u32 s43, s43, s49""")
        s.uk_setup()
        for n in range(s.p["pre"]): s.uk_dma(n)
        s.masks(96, 8)
        for t in range(8):
            src = 12 + (t >> 1)
            a(f"v_and_b32 v{100+t}, 0xffff0000, v{src}" if t & 1 else f"v_lshlrev_b32 v{100+t}, 16, v{src}")
        for t in range(8): a(f"v_mul_f32 v{108+t}, 0xbfb8aa3b, v{100+t}")
        for t in range(8): a(f"v_exp_f32 v{108+t}, v{108+t}")
        for t in range(8): a(f"v_add_f32 v{108+t}, 1.0, v{108+t}")
        for t in range(8): a(f"v_rcp_f32 v{108+t}, v{108+t}")
        for t in range(8): a(f"v_mul_f32 v{100+t}, v{100+t}, v{108+t}")
        for t in range(8): a(f"v_cvt_pk_bf16_f32 v{100+t}, v{100+t}, v{100+t}")
        for t in range(8):
            for q in range(4): a(f"v_and_b32 v{64+4*t+q}, v{96+q}, v{100+t}")
        a("v_mov_b32 v8, 0\nv_mov_b32 v9, 0\nv_mov_b32 v10, 0x3f803f80")
        for k in range(8): a(f"v_dot2c_f32_bf16 v8, v{16+k}, v10\nv_dot2c_f32_bf16 v9, v{16+k}, v{16+k}")
        s.ror("v_add_f32", [8, 9], [8, 4, 2, 1]); s.xrow("v_add_f32", [8, 9], [10, 11], (16,))
        s.rstd(8, 9, 10)
        a(f"""v_lshlrev_b32 v16, 16, v24
        v_and_b32 v17, 0xffff0000, v24
        v_lshlrev_b32 v18, 16, v25
        v_and_b32 v19, 0xffff0000, v25
        v_cmp_le_u32 vcc, 8, v2
        s_cmp_eq_u32 s40, 0
        s_cselect_b32 s49, 1.0, 0
        v_mov_b32 v20, s49""")
        for r in range(4): a(f"v_sub_f32 v{16+r}, v{16+r}, v8\nv_mul_f32 v{16+r}, v{16+r}, v9\nv_cndmask_b32 v{16+r}, 1.0, v{16+r}, vcc\nv_cndmask_b32 v{12+r}, 0, v20, vcc")
        a(f"""s_lshl_b32 s49, s38, 10
        s_add_u32 s49, s49, {RED}
        v_add_u32 v21, s49, v4
        v_add_u32 v22, {RED}, v4
        s_lshl_b32 s43, s36, 2
        s_add_u32 s43, s43, s37
        s_lshl_b32 s43, s43, 9
        v_lshrrev_b32 v23, 1, v3
        v_lshl_add_u32 v23, v23, 2, s37
        v_xor_b32 v23, v23, v7
        v_lshl_add_u32 v30, v3, 7, s43
        v_lshl_add_u32 v30, v23, 4, v30
        v_and_b32 v23, 16, v0
        v_cmp_ne_u32 s[60:61], 0, v23""")
        s.mktag(); a("v_mov_b32 v31, s63")
        s.stamp(1)
        for t in range(8): a(f"{MF} v[12:15], {v4(64+4*t)}, {v4(32+4*t)}, v[12:15]")
        a("v_pk_mul_f32 v[12:13], v[12:13], v[16:17]\nv_pk_mul_f32 v[14:15], v[14:15], v[18:19]")
        L = a.newlabel("P1")
        a(f"""ds_write_b128 v21, v[12:15]
        s_waitcnt lgkmcnt(0)
        s_barrier
        s_cmp_lg_u32 s38, 0
        s_cbranch_scc1 {L}""")
        for w in range(1, 4): a(f"ds_read_b128 {v4(32+4*w)}, v22 offset:{1024*w}")
        a("""v_pk_add_f32 v[12:13], v[12:13], v[36:37]
        v_pk_add_f32 v[14:15], v[14:15], v[38:39]
        v_pk_add_f32 v[40:41], v[40:41], v[44:45]
        v_pk_add_f32 v[42:43], v[42:43], v[46:47]
        v_pk_add_f32 v[12:13], v[12:13], v[40:41]
        v_pk_add_f32 v[14:15], v[14:15], v[42:43]""")
        s.ror("v_add_f32", [12, 13, 14, 15], [8])
        a(f"""v_cvt_pk_bf16_f32 v12, v12, v13
        v_cvt_pk_bf16_f32 v13, v14, v15
        v_cndmask_b32 v16, v31, v12, s[60:61]
        v_cndmask_b32 v17, v31, v13, s[60:61]
        v_cndmask_b32 v18, v12, v31, s[60:61]
        v_cndmask_b32 v19, v13, v31, s[60:61]
        s_mov_b32 exec_lo, 0x00ff00ff
        s_mov_b32 exec_hi, 0x00ff00ff
        global_store_dwordx4 v30, v[16:19], s[34:35] sc1
        s_mov_b64 exec, -1
        {L}:""")
        s.stamp(2)
        s.gidx(); s.qaclr(1)
        a(f"""s_lshl_b32 s41, s37, 14
        s_lshl_b32 s42, s36, 10
        s_add_u32 s41, s41, s42
        s_lshr_b32 s42, s38, 1
        s_lshl_b32 s42, s42, 13
        s_add_u32 s41, s41, s42
        s_and_b32 s42, s38, 1
        s_lshl_b32 s42, s42, 9
        s_add_u32 s41, s41, s42
        s_add_u32 s41, s41, {MD}
        v_lshl_add_u32 v8, v0, 3, s41
        global_store_dwordx2 v8, v[28:29], s[34:35] sc1 ; @w:clr""")
        for n in range(s.p["pre"], 16): s.uk_dma(n)
        s.p2b(1)
        a(f"""s_mul_i32 s41, s40, 196608
        s_lshl_b32 s42, s36, 9
        s_add_u32 s41, s41, s42
        s_add_u32 s41, s41, {2048+3072}
        s_add_u32 s44, s28, s41
        s_addc_u32 s45, s29, 0
        v_mul_u32_u24 v5, 49152, v3
        v_lshl_add_u32 v5, v2, 4, v5""")
        for t in range(8):
            for u in range(2): a(f"global_load_dwordx4 {v4(128+32*u+4*t)}, v5, s[44:45] offset:{(3072 if t&1 else -3072)+256*u}{nt}")
            if t & 1 and t < 7: a("v_add_u32 v5, 12288, v5")
        s.g_w1dma()
        for t in range(8):
            for u in range(2): a(f"{MF} {v4(12+4*u)}, {v4(64+4*t)}, {v4(128+32*u+4*t)}, {v4(12+4*u) if t else 0}")
        L = a.newlabel("R")
        a(f"""ds_write_b128 v21, v[12:15]
        ds_write_b128 v21, v[16:19] offset:4096
        v_bfe_u32 v22, v0, 1, 4
        v_and_b32 v23, 1, v0
        v_lshl_add_u32 v22, v23, 4, v22
        v_and_b32 v23, 32, v0
        v_add_u32 v22, v22, v23
        s_lshl_b32 s49, s38, 12
        s_add_u32 s49, s49, {RED}
        v_lshl_add_u32 v22, v22, 4, s49
        s_lshl_b32 s41, s37, 14
        s_lshl_b32 s42, s36, 10
        s_add_u32 s41, s41, s42
        s_lshl_b32 s42, s38, 9
        s_add_u32 s41, s41, s42
        s_add_u32 s41, s41, {MD}
        v_lshl_add_u32 v24, v23, 8, s41
        v_and_b32 v23, 31, v0
        v_lshl_add_u32 v24, v23, 4, v24
        s_waitcnt lgkmcnt(0)
        s_barrier
        s_cmp_ge_u32 s38, 2
        s_cbranch_scc1 {L}""")
        for w in range(4): a(f"ds_read_b128 {v4(32+4*w)}, v22 offset:{1024*w}")
        a(f"""v_pk_add_f32 v[32:33], v[32:33], v[36:37]
        v_pk_add_f32 v[34:35], v[34:35], v[38:39]
        v_pk_add_f32 v[40:41], v[40:41], v[44:45]
        v_pk_add_f32 v[42:43], v[42:43], v[46:47]
        v_pk_add_f32 v[32:33], v[32:33], v[40:41]
        v_pk_add_f32 v[34:35], v[34:35], v[42:43]
        global_store_dwordx4 v24, v[32:35], s[34:35] sc1
        {L}:
        s_branch G_MAIN""")
    def p2b(s, nb):
        a = s.a
        s.flagaddr(30, 56, 119); s.flagload(30, 31)
        a(f"""v_lshl_add_u32 v8, v7, 1, v6
        v_lshl_add_u32 v9, v8, 10, s48
        v_xor_b32 v8, v3, v8""")
        for st in range(4): a(f"v_xor_b32 v10, {4*st}, v8\nv_lshl_add_u32 v{12+st}, v10, 4, v9")
        a(f"""s_lshl_b32 s49, s50, 12
        s_add_u32 s49, s49, {Q1}
        s_lshl_b32 s41, s38, 10
        s_add_u32 s49, s49, s41
        v_add_u32 v10, s49, v4
        v_lshrrev_b32 v11, 1, v3
        v_lshl_add_u32 v11, v11, 15, s56
        v_lshl_add_u32 v11, v7, 4, v11
        v_xor_b32 v16, v3, v7
        v_lshlrev_b32 v16, 4, v16
        v_lshl_add_u32 v16, v7, 8, v16
        v_lshl_add_u32 v16, v6, 7, v16
        v_add_u32 v16, {Q1L}, v16
        v_xor_b32 v17, 64, v16
        s_mov_b32 s64, 0x3e0293ee
        WAIT clr
        s_barrier""")
        s.setflag(8, 9)
        for blk in range(nb):
            a(f"WAIT uk{16*blk+15}")
            for t in range(4):
                for st in range(4): a(f"ds_read_b128 {v4(128+64*blk+16*t+4*st)}, v{12+st} offset:{16384*blk+256*t}")
        s.flagwait(30, 31)
        s.stamp(3)
        L, D = a.newlabel("QL"), a.newlabel("QD")
        a(f"""s_add_u32 m0, s41, {Q1L}
        s_mov_b32 s69, {s.p['tmo']}
        {L}:
        global_load_lds_dwordx4 v10, s[34:35] sc1
        s_waitcnt vmcnt(0)
        s_barrier""")
        for st in range(4): a(f"ds_read_b128 {v4(32+4*st)}, v{16+(st&1)} offset:{2048*(st>>1)}")
        s.chk(range(32, 48), 8)
        a(f"s_cbranch_vccz {D}\ns_barrier\ns_sub_u32 s69, s69, 1\ns_cbranch_scc0 {L}\n{D}:")
        s.stamp(4)
        for blk in range(nb):
            D = 48 if blk == 0 else 100
            for st in range(4):
                for t in range(4): a(f"{MF} {v4(D+4*t)}, {v4(32+4*st)}, {v4(128+64*blk+16*t+4*st)}, {v4(D+4*t) if st else 0}")
        for blk in range(nb):
            D = 48 if blk == 0 else 100
            for t in range(4): a(f"v_pk_add_f32 {v2(D+4*t)}, {v2(D+4*t)}, {v2(D+4*t+2)}")
            for t in range(4): a(f"v_add_f32 v{D+4*t}, v{D+4*t}, v{D+4*t+1}")
            s.xrow("v_add_f32", [D + 4 * t for t in range(4)], [D + 4 * t + 1 for t in range(4)], (16,))
            for t in range(4): a(f"v_mul_f32 v{D+4*t}, s64, v{D+4*t}")
            a(f"""v_cvt_pk_bf16_f32 v{D}, v{D}, v{D+4}
            v_cvt_pk_bf16_f32 v{D+1}, v{D+8}, v{D+12}
            v_mov_b32_dpp v{D+2}, v{D} row_ror:8 row_mask:0xf bank_mask:0xf
            v_mov_b32_dpp v{D+3}, v{D+1} row_ror:8 row_mask:0xf bank_mask:0xf
            s_mov_b32 exec_lo, 0xff
            s_mov_b32 exec_hi, 0xff
            global_store_dwordx4 v11, {v4(D)}, s[34:35] offset:{128*blk} sc1
            s_mov_b64 exec, -1""")
        s.stamp(5)
    def role_QI(s):
        a = s.a
        a(f"""ROLE_QI:
        s_cmp_eq_u32 s37, 6
        s_cbranch_scc1 ROLE_I
        s_sub_u32 s50, s2, 16
        s_lshl_b32 s52, s38, 8
        s_lshl_b32 s43, s38, 20
        s_lshl_b32 s49, s50, 8
        s_add_u32 s43, s43, s49""")
        s.uk_setup()
        for n in range(32):
            s.uk_dma(n)
            if n == 7: s.epoch(); s.gidx(); s.qaclr(2)
        s.mktag()
        s.p2b(2)
        s.g_w1dma()
        a("s_branch G_MAIN")
    def role_I(s):
        a = s.a
        a(f"""ROLE_I:
        s_getpc_b64 s[40:41]
        PC0:
        s_sub_u32 s40, s40, PC0-{KNAME}
        s_subb_u32 s41, s41, 0
        s_lshl_b32 s42, s38, 10
        v_add_u32 v5, s42, v4""")
        for k in range(s.p["codekb"] // 4):
            a(f"v_min_u32 v8, CODE_END-{KNAME}-16, v5\nglobal_load_dwordx4 {v4(32+4*k)}, v8, s[40:41]\nv_add_u32 v5, 4096, v5")
        s.epoch(); s.gidx()
        s.g_w1dma(); s.mktag()
        a("WAIT clr\ns_barrier"); s.setflag(8, 9)
        s.stamp(1)
        a("s_lshl_b32 s41, s38, 6"); s.flagaddr(30, "s41", 247)
        s.flagwait(30, 31, issued=False)
        a(f"""s_barrier
        v_mov_b32 v8, {EPO}
        v_mov_b32 v9, s63
        s_lshl_b32 s41, s38, 8
        s_add_u32 s41, s41, s2
        s_cmp_eq_u32 s41, 48
        s_cselect_b64 exec, 1, 0
        global_store_dword v8, v9, s[34:35] sc1
        s_mov_b64 exec, -1""")
        s.stamp(2)
    def g_w1dma(s):
        a = s.a
        a(f"""s_mul_i32 s41, s38, {128*3584}
        s_lshl_b32 s42, s55, 7
        s_add_u32 s41, s41, s42
        s_add_u32 s46, s18, s41
        s_addc_u32 s47, s19, 0
        v_lshrrev_b32 v26, 3, v0
        v_mul_u32_u24 v26, 3584, v26
        v_lshl_add_u32 v26, v7, 4, v26
        s_lshl_b32 s48, s38, 15""")
        for n in range(16):
            a(f"s_add_u32 m0, s48, {n*1024}\nglobal_load_lds_dwordx4 v26, s[46:47]{s.nt} ; @w:w1\nv_add_u32 v26, {8*3584}, v26")
    def g_main(s):
        a = s.a; nt = s.nt
        a(f"""G_MAIN:
        s_lshl_b32 s41, s55, 16
        s_lshl_b32 s42, s38, 8
        s_add_u32 s41, s41, s42
        s_add_u32 s41, s41, 4096
        s_add_u32 s44, s22, s41
        s_addc_u32 s45, s23, 0
        v_lshlrev_b32 v5, 13, v3
        v_lshl_add_u32 v5, v2, 4, v5""")
        for st in range(2):
            for r in range(8): a(f"global_load_dwordx4 {v4(64+32*st+4*r)}, v5, s[44:45] offset:{1024*r-4096}{nt}")
            if st == 0: a("v_add_u32 v5, 32768, v5")
        a(f"""v_and_b32 v8, 1, v3
        v_lshlrev_b32 v9, 4, v2
        v_lshl_add_u32 v9, v8, 3, v9
        v_add_u32 v9, s42, v9
        s_lshl_b32 s43, s54, 10
        v_add_u32 v10, s43, v9
        global_load_dwordx2 v[24:25], v10, s[4:5]
        s_lshl_b32 s41, s55, 7
        s_lshl_b32 s49, s38, 5
        s_add_u32 s41, s41, s49
        v_lshl_add_u32 v10, v2, 1, s41
        global_load_ushort v22, v10, s[20:21]
        s_and_b32 s56, s55, 15
        s_lshr_b32 s41, s56, 2
        s_lshl_b32 s41, s41, 8
        s_and_b32 s49, s56, 1
        s_lshl_b32 s49, s49, 7
        s_add_u32 s41, s41, s49
        s_and_b32 s49, s56, 2
        s_lshl_b32 s49, s49, 2
        s_add_u32 s41, s41, s49
        v_lshl_add_u32 v23, v7, 4, s41
        global_load_dwordx2 v[20:21], v23, s[24:25]
        v_lshrrev_b32 v10, 2, v2
        v_lshl_add_u32 v10, v3, 3, v10
        v_lshlrev_b32 v10, 7, v10
        v_and_b32 v11, 3, v2
        v_lshl_add_u32 v10, v11, 3, v10
        s_lshl_b32 s49, s38, 5
        v_add_u32 v10, s49, v10
        v_add_u32 v11, 65536, v10""")
        s.flagaddr(30, 0, 55); s.flagload(30, 31)
        a("""WAIT w1
        s_barrier""")
        for st in range(16):
            for h in range(2): a(f"ds_read_b64_tr_b16 {v2(128+4*st+2*h)}, v{10+(st>>3)} offset:{((st>>2)&1)*32768+(st&3)*4096+h*512}")
        s.perm(64, 192); s.perm(96, 224)
        s.stamp(6)
        a(f"""s_lshl_b32 s41, s54, 13
        s_lshl_b32 s49, s38, 11
        s_add_u32 s41, s41, s49
        s_add_u32 s41, s41, {MD}
        v_add_u32 v12, s41, v4
        v_add_u32 v13, 16384, v12
        v_add_u32 v14, 32768, v12
        v_add_u32 v15, 49152, v12""")
        s.flagwait(30, 31)
        s.poll("\n".join(f"global_load_dwordx4 {v4(64+8*k+4*u)}, v{12+k}, s[34:35] offset:{1024*u} sc1" for k in range(4) for u in range(2)), range(64, 96), 8)
        for q in range(4): a(f"v_pk_add_f32 {v2(64+2*q)}, {v2(64+2*q)}, {v2(72+2*q)}\nv_pk_add_f32 {v2(80+2*q)}, {v2(80+2*q)}, {v2(88+2*q)}\nv_pk_add_f32 {v2(64+2*q)}, {v2(64+2*q)}, {v2(80+2*q)}")
        a("s_cmp_eq_u32 s38, 2\ns_cselect_b32 s41, 1.0, 0")
        for q in range(8): a(f"v_add_f32 v{64+q}, s41, v{64+q}")
        a(f"""s_add_u32 s49, s49, {MODF}
        v_add_u32 v12, s49, v4
        ds_write_b128 v12, v[64:67]
        ds_write_b128 v12, v[68:71] offset:1024
        s_mul_i32 s49, s38, 2176
        s_add_u32 s49, s49, {HL}
        v_lshl_add_u32 v12, v0, 3, s49""")
        for q in range(4): a(f"v_cvt_pk_bf16_f32 v{72+q}, v{64+2*q}, v{65+2*q}")
        for q in range(4): a(f"v_lshlrev_b32 v80, 16, v{72+q}\nv_and_b32 v81, 0xffff0000, v{72+q}\nv_sub_f32 v80, v{64+2*q}, v80\nv_sub_f32 v81, v{65+2*q}, v81\nv_cvt_pk_bf16_f32 v{76+q}, v80, v81")
        a(f"""ds_write_b64 v12, v[72:73]
        ds_write_b64 v12, v[74:75] offset:512
        ds_write_b64 v12, v[76:77] offset:1088
        ds_write_b64 v12, v[78:79] offset:1600
        v_and_b32 v12, 3, v2
        v_mul_u32_u24 v12, 1088, v12
        v_lshl_add_u32 v12, v3, 4, v12
        v_add_u32 v12, {HL+2176}, v12
        v_lshlrev_b32 v13, 1, v9
        v_add_u32 v13, {MODF}, v13
        v_lshlrev_b32 v14, 5, v0
        v_add_u32 v14, {MODF}, v14
        v_lshlrev_b32 v15, 1, v23
        v_add_u32 v15, {MODF}, v15
        v_mov_b32 v60, 0x3f803f80
        v_mov_b32 v61, 0x3f803f80
        v_mov_b32 v62, 0x3f803f80
        v_mov_b32 v63, 0x3f803f80
        s_waitcnt lgkmcnt(0)
        s_barrier""")
        for st in range(16): a(f"ds_read_b128 {v4(64+4*st)}, v12 offset:{64*st}")
        for st in range(16):
            a(f"{MF} v[56:59], v[60:63], {v4(128+4*st)}, {'v[56:59]' if st else 0}")
            a(f"{MF} v[52:55], {v4(64+4*st)}, {v4(128+4*st)}, {'v[52:55]' if st else 0}")
        a(f"""ds_read_b128 v[32:35], v13
        ds_read_b128 v[36:39], v13 offset:4096
        ds_read_b128 v[40:43], v14 offset:2048
        ds_read_b128 v[44:47], v14 offset:2064
        ds_read_b128 v[16:19], v15 offset:6144
        v_add_f32 v52, v52, v53
        v_add_f32 v53, v54, v55
        v_mov_b32 v54, v56
        v_lshlrev_b32 v22, 16, v22
        ds_read_b128 v[56:59], v14 offset:4096
        ds_read_b128 v[60:63], v14 offset:4112""")
        s.masks(48, 8, 0x3f80)
        a(f"""v_lshlrev_b32 v26, 16, v24
        v_and_b32 v27, 0xffff0000, v24
        v_lshlrev_b32 v28, 16, v25
        v_and_b32 v29, 0xffff0000, v25
        s_lshl_b32 s41, s54, 15
        s_add_u32 s41, s41, s42
        s_add_u32 s41, s41, {AO}
        v_lshlrev_b32 v5, 10, v3
        v_lshl_add_u32 v5, v2, 4, v5
        v_add_u32 v5, s41, v5""")
        for q in range(4): a(f"v_add_u32 v{104+q}, {8192*q+4096}, v5")
        a(f"""v_lshrrev_b32 v10, 1, v3
        v_mul_u32_u24 v10, 1088, v10
        v_add_u32 v10, v9, v10
        v_add_u32 v10, {XH}, v10
        v_and_b32 v11, 1, v2
        v_mul_u32_u24 v11, 1088, v11
        v_lshl_add_u32 v11, v3, 4, v11
        v_add_u32 v11, {XH}, v11
        v_cmp_le_u32 s[58:59], 32, v0
        v_and_b32 v8, 16, v0
        v_cmp_ne_u32 s[60:61], 0, v8
        s_lshl_b32 s49, s38, 5
        s_add_u32 s49, s49, {HH}
        v_lshl_add_u32 v24, v2, 1, s49
        v_lshlrev_b32 v25, 4, v3
        v_add_u32 v25, {HH}, v25
        s_add_u32 s41, s57, s55
        s_lshl_b32 s41, s41, 11
        s_lshl_b32 s49, s38, 9
        s_add_u32 s41, s41, s49
        s_add_u32 s41, s41, {OP}
        v_add_u32 v30, s41, v4
        s_mov_b32 s62, 0xbdd2d3e8
        v_mov_b32 v55, 0xc0135761
        s_waitcnt lgkmcnt(0)""")
        s.stamp(7)
        s.poll("\n".join(f"global_load_dwordx4 {v4(64+4*q)}, v{104+(q>>1)}, s[34:35] offset:{0 if q&1 else -4096} sc1" for q in range(8)), range(64, 96), 8)
        s.stamp(8)
        for q in range(8): a(f"{MF} {v4(96+4*(q&1))}, v[48:51], {v4(64+4*q)}, {v4(96+4*(q&1)) if q>1 else 0}")
        a("""v_pk_add_f32 v[96:97], v[96:97], v[100:101]
        v_pk_add_f32 v[98:99], v[98:99], v[102:103]
        v_pk_fma_f32 v[96:97], v[96:97], v[32:33], v[26:27]
        v_pk_fma_f32 v[98:99], v[98:99], v[34:35], v[28:29]
        v_pk_mul_f32 v[100:101], v[96:97], v[36:37]
        v_pk_mul_f32 v[102:103], v[98:99], v[38:39]""")
        a(f"ds_write_b128 v13, v[96:99] offset:{X1F-MODF}")
        a("""v_cvt_pk_bf16_f32 v104, v100, v101
        v_cvt_pk_bf16_f32 v105, v102, v103
        v_lshlrev_b32 v106, 16, v104
        v_and_b32 v107, 0xffff0000, v104
        v_lshlrev_b32 v108, 16, v105
        v_and_b32 v109, 0xffff0000, v105
        v_pk_add_f32 v[100:101], v[100:101], v[106:107] neg_lo:[0,1] neg_hi:[0,1]
        v_pk_add_f32 v[102:103], v[102:103], v[108:109] neg_lo:[0,1] neg_hi:[0,1]
        v_cvt_pk_bf16_f32 v106, v100, v101
        v_cvt_pk_bf16_f32 v107, v102, v103
        v_cndmask_b32 v104, v104, v106, s[58:59]
        v_cndmask_b32 v105, v105, v107, s[58:59]
        ds_write_b64 v10, v[104:105]
        s_waitcnt lgkmcnt(0)
        s_barrier""")
        a(f"ds_read_b128 v[32:35], v14 offset:{X1F-MODF}\nds_read_b128 v[36:39], v14 offset:{X1F-MODF+16}")
        for st in range(16): a(f"ds_read_b128 {v4(64+4*st)}, v11 offset:{64*st}")
        V = Asm(); sa = s.a; s.a = V
        def sums(R):
            V(f"v_pk_add_f32 v[26:27], {v2(R)}, {v2(R+2)}\nv_pk_mul_f32 v[28:29], {v2(R)}, {v2(R)}")
            V(f"v_pk_add_f32 v[26:27], v[26:27], {v2(R+4)}\nv_pk_fma_f32 v[28:29], {v2(R+2)}, {v2(R+2)}, v[28:29]")
            V(f"v_pk_add_f32 v[26:27], v[26:27], {v2(R+6)}\nv_pk_fma_f32 v[28:29], {v2(R+4)}, {v2(R+4)}, v[28:29]")
            V(f"v_add_f32 v26, v26, v27\nv_pk_fma_f32 v[28:29], {v2(R+6)}, {v2(R+6)}, v[28:29]\nv_add_f32 v28, v28, v29")
            s.ror("v_add_f32", [26, 28], [8, 4, 2, 1]); s.xrow("v_add_f32", [26, 28], [27, 29])
            s.rstd(26, 28, 27)
        sums(32)
        for q in range(4): V(f"v_pk_add_f32 {v2(32+2*q)}, {v2(32+2*q)}, v[26:27] op_sel_hi:[1,0] neg_lo:[0,1] neg_hi:[0,1]")
        for q in range(4): V(f"v_pk_mul_f32 {v2(56+2*q)}, {v2(56+2*q)}, v[28:29] op_sel_hi:[1,0]")
        V("v_mul_f32 v53, v53, v26\nv_mov_b32 v31, v28")
        for q in range(4): V(f"v_pk_fma_f32 {v2(32+2*q)}, {v2(32+2*q)}, {v2(56+2*q)}, {v2(40+2*q)}")
        sums(32)
        V("v_fma_f32 v52, -v26, v54, v52")
        s.a = sa
        vl = V.lines; k = 0; per = (len(vl) + 15) // 16
        for st in range(16):
            for x in vl[k:k+per]: a(x)
            k += per
            a(f"{MF} {v4(44+4*(st&1)) if 0 else v4(48 if st&1 else 8)}, {v4(64+4*st)}, {v4(128+4*st)}, {v4(48 if st&1 else 8) if st>1 else 0}")
        a(f"""v_add_f32 v8, v8, v9
        v_add_f32 v48, v48, v49
        v_sub_f32 v8, v8, v53
        v_add_f32 v8, v8, v48
        v_fma_f32 v8, v8, v31, v52
        v_fma_f32 v8, v8, v28, v22
        v_mul_f32 v9, v8, v8
        v_fma_f32 v9, v9, s62, v55
        v_mul_f32 v9, v9, v8
        v_exp_f32 v9, v9
        v_add_f32 v9, 1.0, v9
        v_rcp_f32 v9, v9
        v_mul_f32 v8, v8, v9
        v_cvt_pk_bf16_f32 v8, v8, v8
        ds_write_b16 v24, v8
        s_waitcnt lgkmcnt(0)
        s_barrier
        ds_read_b128 v[32:35], v25
        ds_read_b128 v[36:39], v25 offset:64""")
        for st in range(2):
            for i in (0, 4, 1, 5, 2, 6, 3, 7): a(f"{MF} {v4(64+4*i)}, {v4(32+4*st)}, {v4(192+32*st+4*i)}, {v4(64+4*i) if st else 0}")
        for r in range(4): a(f"v_cndmask_b32 v{40+r}, v{64+4*r}, v{80+4*r}, s[60:61]")
        a("""s_mov_b32 exec_hi, 0
        global_store_dwordx4 v30, v[40:43], s[34:35] sc1
        s_mov_b32 exec_hi, -1""")
        s.stamp(9)
        a(f"""s_cmp_lg_u32 s38, 0
        s_cbranch_scc1 FIN
        s_cmp_ge_u32 s55, 16
        s_cbranch_scc1 FIN
        s_lshl_b32 s41, s57, 11
        s_lshl_b32 s49, s55, 7
        s_add_u32 s41, s41, s49
        s_add_u32 s41, s41, {OP}
        v_lshrrev_b32 v8, 3, v0
        v_lshl_add_u32 v9, v7, 4, s41
        v_lshl_add_u32 v10, v8, 11, v9
        v_add_u32 v11, 16384, v10
        v_add_u32 v12, 32768, v10
        v_and_b32 v8, 3, v8
        v_lshl_add_u32 v13, v8, 11, v9
        v_add_u32 v13, 49152, v13
        ds_read_b128 v[32:35], v15 offset:{X1F-MODF}
        v_lshlrev_b32 v36, 16, v20
        v_and_b32 v37, 0xffff0000, v20
        v_lshlrev_b32 v38, 16, v21
        v_and_b32 v39, 0xffff0000, v21
        v_add_u32 v23, s43, v23
        v_pk_fma_f32 v[32:33], v[36:37], v[16:17], v[32:33]
        v_pk_fma_f32 v[34:35], v[38:39], v[18:19], v[34:35]""")
        s.poll("\n".join(f"global_load_dwordx4 {v4(64+4*q)}, v{10+q}, s[34:35] sc1" for q in range(4)), range(64, 80), 8)
        s.stamp(10)
        a("""v_pk_add_f32 v[64:65], v[64:65], v[68:69]
        v_pk_add_f32 v[66:67], v[66:67], v[70:71]
        s_mov_b32 exec_hi, 0
        v_pk_add_f32 v[72:73], v[72:73], v[76:77]
        v_pk_add_f32 v[74:75], v[74:75], v[78:79]
        s_mov_b32 exec_hi, -1
        v_pk_add_f32 v[64:65], v[64:65], v[72:73]
        v_pk_add_f32 v[66:67], v[66:67], v[74:75]""")
        s.ror("v_add_f32", [64, 65, 66, 67], [8]); s.xrow("v_add_f32", [64, 65, 66, 67], [68, 69, 70, 71])
        a("""v_pk_fma_f32 v[32:33], v[64:65], v[16:17], v[32:33]
        v_pk_fma_f32 v[34:35], v[66:67], v[18:19], v[34:35]
        v_cvt_pk_bf16_f32 v32, v32, v33
        v_cvt_pk_bf16_f32 v33, v34, v35
        s_mov_b64 exec, 0xff
        global_store_dwordx2 v23, v[32:33], s[30:31]
        s_mov_b64 exec, -1""")
        s.stamp(11)
        a("s_branch FIN")
    def role_E(s):
        a = s.a; nt = s.nt
        EB, EX = 0, 4096
        a(f"""ROLE_E:
        s_sub_u32 s40, s37, 7
        s_and_b32 s54, s40, 1
        s_lshr_b32 s40, s40, 1
        s_lshl_b32 s40, s40, 3
        s_add_u32 s50, s40, s36
        s_lshl_b32 s41, s38, 20
        s_lshl_b32 s42, s50, 8
        s_add_u32 s41, s41, s42
        s_lshl_b32 s43, s54, 7
        s_add_u32 s43, s43, s41
        v_lshlrev_b32 v5, 16, v3
        v_lshl_add_u32 v5, v6, 18, v5
        v_lshl_add_u32 v5, v7, 4, v5
        s_add_u32 s44, s8, s43
        s_addc_u32 s45, s9, 0
        s_add_u32 s46, s44, 8192
        s_addc_u32 s47, s45, 0""")
        for kk in range(2):
            for r in range(8):
                a(f"global_load_dwordx4 {v4(64+32*kk+4*r)}, v5, s[{46 if r&1 else 44}:{47 if r&1 else 45}]{nt}")
                if r & 1 and (kk, r) != (1, 7): a(f"v_add_u32 v5, {16384 if r<7 else (64-6)*8192}, v5")
        s.epoch()
        HB = 8192
        a(f"""s_lshl_b32 s43, s50, 12
        s_lshl_b32 s49, s54, 11
        s_add_u32 s43, s43, s49
        s_add_u32 s43, s43, {Q1}
        s_lshl_b32 s49, s38, 9
        s_add_u32 s43, s49, s43
        v_lshl_add_u32 v8, v0, 3, s43
        global_store_dwordx2 v8, v[28:29], s[34:35] sc1
        s_lshl_b32 s51, s54, 5
        s_add_u32 s51, s51, s50
        s_lshl_b32 s52, s51, 10
        s_lshl_b32 s49, s38, 8
        s_add_u32 s52, s52, s49
        s_add_u32 s52, s52, {AO}
        v_add_u32 v8, s52, v1
        global_store_dword v8, v28, s[34:35] sc1 ; @w:clrE
        s_lshr_b32 s55, s51, 4
        s_lshl_b32 s53, s55, 12
        s_lshl_b32 s55, s55, 19
        s_and_b32 s49, s50, 15
        s_lshl_b32 s48, s49, 3
        s_add_u32 s53, s53, s48
        s_add_u32 s53, s53, {ST}
        s_lshl_b32 s49, s49, 10
        s_add_u32 s55, s55, s49
        s_add_u32 s55, s55, {PT}
        s_lshl_b32 s49, s38, 12
        v_add_u32 v9, s49, v4
        s_add_u32 m0, s49, {HB}
        s_add_u32 s49, s49, {HB}
        v_lshl_add_u32 v11, v6, 2, v3
        v_xor_b32 v11, v11, v7
        v_lshl_add_u32 v11, v11, 4, s49
        v_and_b32 v8, 3, v7
        v_lshl_add_u32 v11, v8, 9, v11
        v_lshrrev_b32 v8, 2, v7
        v_lshl_add_u32 v11, v8, 8, v11
        s_lshl_b32 s49, s38, 1
        v_add_u32 v8, s49, v6
        v_xor_b32 v8, v8, v7
        v_lshl_add_u32 v10, v8, 4, s43
        v_lshl_add_u32 v10, v6, 8, v10
        v_and_b32 v8, 1, v3
        v_lshl_add_u32 v10, v8, 7, v10""")
        s.perm(64, 128); s.perm(96, 160)
        s.mktag()
        s.stamp(1)
        h1 = "\n".join(f"global_load_lds_dwordx4 v9, s[34:35] offset:{1024*k} sc1 ; @w:h1" for k in range(4))
        L, C, D = a.newlabel("HL"), a.newlabel("HC"), a.newlabel("HD")
        a(h1)
        a("WAIT clrE\ns_barrier"); s.setflag(20, 21)
        s.stamp(2)
        a(f"s_mov_b32 s69, {s.p['tmo']}\nWAIT h1\ns_branch {C}\n{L}:"); a(h1); a(f"WAIT h1\n{C}:")
        for k in range(4): a(f"ds_read_b128 {v4(12+4*k)}, v11 offset:{2048*(k>>1)+128*(k&1)}")
        a(f"""v_xor_b32 v12, s63, v12
        v_xor_b32 v19, s63, v19
        v_xor_b32 v20, s63, v20
        v_or3_b32 v12, v12, v19, v20
        v_xor_b32 v27, s63, v27
        v_or_b32 v12, v12, v27
        v_cmp_ne_u32 vcc, 0, v12
        s_cbranch_vccz {D}
        s_sub_u32 s69, s69, 1
        s_cbranch_scc0 {L}
        {D}:""")
        s.stamp(3)
        for kk in range(2):
            for i in range(8): a(f"{MF} {v4(32+4*i)}, {v4(14+8*kk)}, {v4(128+32*kk+4*i)}, {v4(32+4*i) if kk else 0}")
        a(f"""s_add_u32 s44, s12, s41
        s_addc_u32 s45, s13, 0
        s_lshl_b32 s49, s54, 15
        v_lshl_add_u32 v5, v3, 13, s49
        v_lshl_add_u32 v5, v2, 4, v5""")
        for i in range(8): a(f"v_pk_add_f32 {v2(32+4*i)}, {v2(32+4*i)}, {v2(34+4*i)}\nv_add_f32 v{32+4*i}, v{32+4*i}, v{33+4*i}")
        for q in range(4): a(f"v_cvt_pk_bf16_f32 v{12+q}, v{32+8*q}, v{36+8*q}")
        a("""s_mov_b32 exec_lo, 0x00ff00ff
        s_mov_b32 exec_hi, 0xff00ff00
        global_store_dwordx4 v10, v[12:15], s[34:35] sc1
        s_mov_b64 exec, -1""")
        s.stamp(4)
        a(f"""s_lshl_b32 s41, s50, 17
        s_lshl_b32 s49, s38, 8
        s_add_u32 s41, s41, s49
        s_add_u32 s41, s41, 4096
        s_add_u32 s46, s14, s41
        s_addc_u32 s47, s15, 0""")
        def ld(n):
            T = 32 + 32 * (n % 3)
            if n < 4:
                for e in range(8):
                    a(f"v_xor_b32 v8, {((n&1)<<15) | ((64*(n>>1)+16*(e&3)+8*(e>>2))<<13)}, v5\nglobal_load_dwordx4 {v4(T+4*e)}, v8, s[44:45]{nt}")
            else:
                a(f"v_xor_b32 v8, {(n-4)<<15}, v5")
                for r in range(8): a(f"global_load_dwordx4 {v4(T+4*r)}, v8, s[46:47] offset:{1024*r-4096}{nt}")
        ld(0); ld(1)
        for n in range(8):
            if n + 2 < 8: ld(n + 2)
            if n == 5:
                a(f"""s_lshl_b32 s49, s54, 3
                s_lshr_b32 s48, s50, 4
                s_add_u32 s49, s49, s48
                s_lshl_b32 s49, s49, 10
                s_add_u32 s49, s49, {FLG+120*128}
                v_bfe_u32 v30, v0, 3, 2
                v_lshl_add_u32 v30, v30, 11, s49
                v_lshl_add_u32 v30, v7, 7, v30""")
                s.flagload(30, 31)
            if n < 4: s.perm(32 + 32 * (n % 3), 32 * n, True, 22)
            else: s.perm(32 + 32 * (n % 3), 128 + 32 * (n - 4))
        s.masks(24, 8)
        a(f"""v_lshrrev_b32 v8, 3, v0
        v_lshl_add_u32 v9, v8, 7, s53
        s_lshl_b32 s49, s38, 8
        s_add_u32 s55, s55, s49
        v_lshl_add_u32 v10, v8, 14, s55
        v_lshl_add_u32 v10, v7, 4, v10
        v_add_u32 v11, {1<<17}, v10
        v_add_u32 v12, {2<<17}, v10
        v_add_u32 v13, {3<<17}, v10
        s_lshl_b32 s49, s38, 9
        v_lshl_add_u32 v14, v2, 4, s49
        v_and_b32 v8, 1, v3
        v_lshl_add_u32 v14, v8, 3, v14
        s_lshl_b32 s40, s54, 6
        v_and_b32 v8, 1, v2
        v_lshl_add_u32 v15, v8, 7, s49
        v_lshl_add_u32 v15, v3, 4, v15
        v_add_u32 v15, s40, v15
        v_xor_b32 v16, 64, v15
        s_lshl_b32 s49, s38, 8
        s_add_u32 s49, s49, {EX}
        v_lshl_add_u32 v17, v2, 4, s49
        v_and_b32 v8, 3, v2
        v_lshlrev_b32 v18, 8, v8
        v_lshl_add_u32 v18, v3, 4, v18
        v_add_u32 v18, s40, v18
        v_xor_b32 v19, 64, v18
        v_lshl_add_u32 v20, v2, 4, s52""")
        s.flagwait(30, 31)
        s.stamp(5)
        s.poll("\n".join(f"global_load_dwordx2 {v2(32+2*q)}, v9, s[34:35] offset:{1024*q} sc1" for q in range(4)), range(32, 40), 8)
        s.stamp(6)
        ptl = lambda hf: "\n".join(f"global_load_dwordx4 {v4(64+16*hf+4*q)}, v{10+q}, s[34:35] offset:{128*hf} sc1" for q in range(4))
        a(ptl(0))
        a("v_max_f32 v40, v32, v34\nv_max3_f32 v40, v40, v36, v38")
        s.ror("v_max_f32", [40], [8]); s.xrow("v_max_f32", [40], [41])
        for q in range(4): a(f"v_sub_f32 v{32+2*q}, v{32+2*q}, v40")
        for q in range(4): a(f"v_exp_f32 v{32+2*q}, v{32+2*q}")
        for q in range(4): a(f"v_cvt_pk_bf16_f32 v{32+2*q}, v{32+2*q}, v{32+2*q}")
        for q in range(4):
            for m in range(4): a(f"v_and_b32 v{48+4*q+m}, v{24+m}, v{32+2*q}")
        for q in range(4): a(f"v_and_b32 v{32+2*q}, 0xffff0000, v{32+2*q}")
        a("v_mul_f32 v40, v32, v33\nv_fmac_f32 v40, v34, v35\nv_fmac_f32 v40, v36, v37\nv_fmac_f32 v40, v38, v39")
        s.ror("v_add_f32", [40], [8]); s.xrow("v_add_f32", [40], [41])
        a("v_rcp_f32 v40, v40")
        for hf in range(2):
            s.poll(ptl(hf), range(64 + 16 * hf, 80 + 16 * hf), 8, issued=True)
            s.stamp(7 + hf)
            if hf == 0: a(ptl(1))
            for q in range(4): a(f"{MF} v[44:47], {v4(48+4*q)}, {v4(64+16*hf+4*q)}, {'v[44:47]' if q else 0}")
            a(f"""v_pk_mul_f32 v[44:45], v[44:45], v[40:41] op_sel_hi:[1,0]
            v_pk_mul_f32 v[46:47], v[46:47], v[40:41] op_sel_hi:[1,0]
            v_cvt_pk_bf16_f32 v42, v44, v45
            v_cvt_pk_bf16_f32 v43, v46, v47
            s_mov_b32 exec_lo, 0x00ff00ff
            s_mov_b32 exec_hi, 0xff00ff00
            ds_write_b64 v14, v[42:43] offset:{256*hf}
            s_mov_b64 exec, -1
            ds_read_b128 v[32:35], v15 offset:{256*hf}
            ds_read_b128 v[36:39], v16 offset:{256*hf}""")
            for k in range(2):
                n = 2 * hf + k
                for i in range(8): a(f"{MF} {v4(96+4*i)}, {v4(32+4*k)}, {v4(32*n+4*i,'a')}, {v4(96+4*i) if n else 0}")
        for i in range(8): a(f"v_add_f32 v{96+4*i}, v{96+4*i}, v{97+4*i}")
        for q in range(4): a(f"v_cvt_pk_bf16_f32 v{32+q}, v{96+8*q}, v{100+8*q}")
        a(f"""s_mov_b64 exec, 0xffff
        ds_write_b128 v17, v[32:35]
        s_mov_b64 exec, -1
        s_waitcnt lgkmcnt(0)
        s_barrier""")
        for n in range(4): a(f"ds_read_b128 {v4(64+4*n)}, v{18+(n&1)} offset:{EX+128*(n>>1)}")
        for n in range(4):
            for i in range(8): a(f"{MF} {v4(96+4*i)}, {v4(64+4*n)}, {v4(128+32*n+4*i)}, {v4(96+4*i) if n else 0}")
        for i in range(8): a(f"v_pk_add_f32 {v2(96+4*i)}, {v2(96+4*i)}, {v2(98+4*i)}\nv_add_f32 v{96+4*i}, v{96+4*i}, v{97+4*i}")
        for q in range(4): a(f"v_cvt_pk_bf16_f32 v{32+q}, v{96+8*q}, v{100+8*q}")
        a("""s_mov_b64 exec, 0xffff
        global_store_dwordx4 v20, v[32:35], s[34:35] sc1
        s_mov_b64 exec, -1""")
        s.stamp(9)
        a("s_branch FIN")
    def role_A(s):
        a = s.a; nt = s.p.get("ntA", s.nt)
        a(f"""ROLE_A:
        s_sub_u32 s40, s37, 15
        s_and_b32 s50, s40, 1
        s_lshr_b32 s40, s40, 1
        s_lshl_b32 s40, s40, 3
        s_add_u32 s51, s40, s36
        s_lshl_b32 s41, s51, 18
        s_lshl_b32 s42, s38, 12
        s_add_u32 s41, s41, s42
        s_mul_i32 s43, s50, {s.p['stg']<<14}
        v_add_u32 v5, s43, v4
        s_mul_i32 s42, s38, 4224
        s_add_u32 s44, s6, s41
        s_addc_u32 s45, s7, 0""")
        def dma(n):
            a(f"v_xor_b32 v8, {n<<14}, v5")
            for r in range(4): a(f"s_add_u32 m0, s42, {(n&7)*16896+r*32}\nglobal_load_lds_dwordx4 v8, s[44:45] offset:{1024*r}{nt} ; @w:c{n}")
        for n in range(4): dma(n)
        a(f"""v_lshrrev_b32 v9, 2, v0
        v_mul_u32_u24 v9, 1056, v9
        v_and_b32 v10, 3, v0
        v_lshl_add_u32 v9, v10, 3, v9
        s_lshl_b32 s43, s38, 8
        v_add_u32 v9, s43, v9
        v_add_u32 v10, 67584, v9
        v_mul_u32_u24 v13, 1056, v2
        v_lshl_add_u32 v13, v3, 4, v13
        s_mul_i32 s49, s38, 16896
        v_add_u32 v11, s49, v13
        v_add_u32 v12, 67584, v11
        v_add_u32 v13, {QAS}, v13
        s_lshr_b32 s52, s51, 5
        s_and_b32 s53, s51, 31
        s_lshl_b32 s52, s52, 1
        s_add_u32 s52, s52, s50
        s_lshl_b32 s49, s52, 14
        s_lshl_b32 s41, s38, 12
        s_add_u32 s49, s49, s41
        s_add_u32 s49, s49, {QA}
        v_add_u32 v14, s49, v4
        s_add_u32 s49, s42, {QAS}
        v_add_u32 v15, s49, v4
        s_lshl_b32 s56, s52, 5
        s_add_u32 s56, s56, s53
        s_lshl_b32 s57, s56, 7
        s_add_u32 s57, s57, {ST}
        s_lshl_b32 s56, s56, 14
        s_add_u32 s56, s56, {PT}
        s_add_u32 s49, s56, s41
        v_add_u32 v8, s49, v4
        v_mov_b32 v30, -1
        v_mov_b32 v31, -1""")
        s.epoch()
        for k in range(4): a(f"global_store_dwordx4 v8, v[28:31], s[34:35] offset:{1024*k} sc1")
        a("""v_add_u32 v8, s57, v1
        s_cmp_eq_u32 s38, 3
        s_cselect_b32 exec_lo, -1, 0
        s_mov_b32 exec_hi, 0
        global_store_dword v8, v28, s[34:35] sc1
        s_mov_b64 exec, -1""")
        s.flagaddr(26, 0, 47)
        qal = "\n".join(f"global_load_dwordx4 {v4(32+4*k)}, v14, s[34:35] offset:{1024*k} sc1" for k in range(4))
        def qk(t):
            for st in range(16): a(f"ds_read_b128 {v4(16*st+4*t,'a')}, v{11+(t&1)} offset:{64*st}")
        for n in range(16):
            a(f"WAIT c{n}\ns_waitcnt lgkmcnt(0)\ns_barrier")
            if n in (0, 7, 15): s.stamp({0: 1, 7: 2, 15: 3}[n])
            if n + 4 < 16: dma(n + 4)
            if n == 4: s.mktag(); s.setflag(8, 16)
            if n == 8: s.flagload(26, 27)
            if n < 8:
                for T in range(8): a(f"ds_read_b64_tr_b16 {v2(128+32*(n&3)+4*T+2*(n>>2))}, v{9+(n>>2)} offset:{(n&3)*16896+32*T}")
            if n in (3, 7, 11): qk(n >> 2)
            if n >= 12:
                L = a.newlabel("AQ")
                a(f"s_cmp_lg_u32 s38, {n&3}\ns_cbranch_scc1 {L}"); qk(3); a(f"{L}:")
            if n == 9:
                a(f"""v_lshlrev_b32 v8, 4, v2
                v_add_u32 v48, {MX}, v8
                s_lshl_b32 s49, s38, 2
                v_add_u32 v49, s49, v48
                s_lshl_b32 s49, s38, 10
                s_add_u32 s49, s49, {PX}
                v_add_u32 v50, s49, v4
                v_add_u32 v51, {PX}, v4
                v_lshl_add_u32 v52, v2, 3, s57
                s_add_u32 s49, s56, s43
                v_lshl_add_u32 v53, v3, 12, s49
                v_lshl_add_u32 v53, v6, 10, v53
                v_lshl_add_u32 v53, v7, 4, v53""")
            if n == 13: s.flagwait(26, 27); a(qal)
        s.poll(qal, range(32, 48), 8, issued=True)
        s.stamp(4)
        for k in range(4): a(f"ds_write_b128 v15, {v4(32+4*k)} offset:{1056*k}")
        a("s_waitcnt lgkmcnt(0)\ns_barrier")
        for st in range(16): a(f"ds_read_b128 {v4(64+4*st)}, v13 offset:{64*st}")
        for st in range(16):
            if st == 5: a("s_waitcnt lgkmcnt(0)")
            for t in range(4):
                a(f"{MF} {v4(16+4*t)}, {v4(16*st+4*t,'a')}, {v4(64+4*st)}, {v4(16+4*t) if st else 0}")
                if 5 <= st < 13:
                    k = st - 5; u = k >> 1; T = 4 * (k & 1) + t
                    for h in range(2): a(f"ds_read_b64_tr_b16 {v2(32*u+4*T+2*h,'a')}, v{9+h} offset:{u*16896+32*T}")
        s.stamp(5)
        a("v_max3_f32 v32, v16, v17, v18")
        for k in range(6): a(f"v_max3_f32 v32, v32, v{19+2*k}, v{20+2*k}")
        a("v_max_f32 v32, v32, v31")
        s.xrow("v_max_f32", [32], [33])
        a("""ds_write_b32 v49, v32
        s_waitcnt lgkmcnt(0)
        s_barrier
        ds_read_b128 v[32:35], v48
        v_max3_f32 v32, v32, v33, v34
        v_max_f32 v54, v32, v35""")
        for k in range(8): a(f"v_pk_add_f32 {v2(16+2*k)}, {v2(16+2*k)}, v[54:55] op_sel_hi:[1,0] neg_lo:[0,1] neg_hi:[0,1]")
        for k in range(8):
            a(f"v_exp_f32 v{16+2*k}, v{16+2*k}\nv_exp_f32 v{17+2*k}, v{17+2*k}")
            if k: a(f"v_cvt_pk_bf16_f32 v{35+k}, v{14+2*k}, v{15+2*k}")
            if k == 4: a("ds_write_b128 v50, v[36:39]")
        a("v_cvt_pk_bf16_f32 v43, v30, v31\nds_write_b128 v50, v[40:43] offset:4096")
        for k in range(4): a(f"v_pk_add_f32 {v2(16+2*k)}, {v2(16+2*k)}, {v2(24+2*k)}")
        a("v_pk_add_f32 v[16:17], v[16:17], v[20:21]\nv_pk_add_f32 v[18:19], v[18:19], v[22:23]\nv_pk_add_f32 v[16:17], v[16:17], v[18:19]\nv_add_f32 v16, v16, v17")
        s.xrow("v_add_f32", [16], [17])
        a(f"ds_write_b32 v49, v16 offset:{LX-MX}\ns_waitcnt lgkmcnt(0)\ns_barrier")
        s.stamp(6)
        for k in range(8): a(f"ds_read_b128 {v4(64+4*k)}, v51 offset:{1024*k}")
        L = a.newlabel("AS")
        a(f"""s_cmp_lg_u32 s38, 3
        s_cbranch_scc1 {L}
        ds_read_b128 v[32:35], v48 offset:{LX-MX}
        v_add_f32 v32, v32, v33
        v_add_f32 v34, v34, v35
        v_add_f32 v55, v32, v34
        s_mov_b64 exec, 0xffff
        global_store_dwordx2 v52, v[54:55], s[34:35] sc1
        s_mov_b64 exec, -1
        {L}:""")
        def epi(hf):
            o = []; D = 96 + 16 * hf
            for r0 in (0, 2):
                O = 16 + 4 * r0 + 16 * hf; t = 56 + r0
                for p in range(2):
                    o.append(f"v_cvt_pk_bf16_f32 v{O+p}, v{D+8*p+r0}, v{D+8*p+4+r0}")
                    o.append(f"v_cvt_pk_bf16_f32 v{O+2+p}, v{D+8*p+r0+1}, v{D+8*p+4+r0+1}")
                    o.append(f"v_cvt_pk_bf16_f32 v{t+p}, v{D+8*p+r0}, v{D+8*p+4+r0}")
                for p in range(2): o.append(f"v_mov_b32_dpp v{O+p}, v{O+2+p} row_ror:8 row_mask:0xf bank_mask:0xc")
                for p in range(2): o.append(f"v_mov_b32_dpp v{O+2+p}, v{t+p} row_ror:8 row_mask:0xf bank_mask:0x3")
                o.append(f"global_store_dwordx4 v53, {v4(O)}, s[34:35] offset:{1024*r0+128*hf} sc1")
            return o
        for hf in range(2):
            e = epi(0) if hf else []; m = 0
            for k in range(8):
                for t4 in range(4):
                    T = 4 * hf + t4
                    B = v4(128 + 32 * k + 4 * T) if k < 4 else v4(32 * (k - 4) + 4 * T, 'a')
                    a(f"{MF} {v4(96+4*T)}, {v4(64+4*k)}, {B}, {v4(96+4*T) if k else 0}")
                    m += 1
                    if m >= 3:
                        for x in e[:3]: a(x)
                        e = e[3:]
            if hf == 0: s.stamp(7)
        for x in epi(1): a(x)
        s.stamp(8)
    def fin(s):
        a = s.a
        a("FIN:")
        if s.p["dbg"] == 2:
            k, lo, hi = s.p["probe"]
            a("s_waitcnt vmcnt(0)"); s.stamp(14)
            a(f"""s_waitcnt lgkmcnt(0)
            s_cmp_lt_u32 s2, {lo}
            s_cbranch_scc1 END
            s_cmp_ge_u32 s2, {hi}
            s_cbranch_scc1 END
            s_cmp_eq_u32 s{70+2*k}, 0
            s_cbranch_scc1 END
            s_mov_b32 s69, 100000
            PRB:
            s_memrealtime s[40:41]
            s_waitcnt lgkmcnt(0)
            s_sub_u32 s40, s40, s{70+2*k}
            s_cmp_ge_u32 s40, 4000
            s_cbranch_scc1 END
            s_sub_u32 s69, s69, 1
            s_cbranch_scc0 PRB""")
        if s.p["dbg"] == 1:
            a("s_waitcnt vmcnt(0)"); s.stamp(14)
            a("s_waitcnt lgkmcnt(0)\nv_mov_b32 v8, 0")
            for k in range(15): a(f"v_writelane_b32 v8, s{70+2*k}, {k}")
            a(f"""s_lshl_b32 s41, s2, 2
            s_add_u32 s41, s41, s38
            s_lshl_b32 s41, s41, 8
            s_add_u32 s41, s41, {STAMP}
            v_add_u32 v9, s41, v1
            global_store_dword v9, v8, s[34:35]""")
        a("END:\ns_endpgm\nCODE_END:")
    def build(s):
        if s.p["dbg"]:
            for k in range(1, 15): s.a(f"s_mov_b32 s{70+2*k}, 0")
        s.prologue(); s.role_P(); s.role_QI(); s.role_I(); s.g_main(); s.role_E(); s.role_A(); s.fin()
        return wrap(s.a.text(), 248, 256, LDS, 256, 256)
if __name__ == "__main__":
    kw = eval("dict(" + (sys.argv[2] if len(sys.argv) > 2 else "") + ")")
    open(sys.argv[1], "w").write(G(**kw).build())
```
